```python
import torch

def _softmax(x, axis=-1):
    return torch.softmax(x, dim=axis)
def _gelu(x):
    return torch.nn.functional.gelu(x, approximate="tanh")
def _silu(x):
    return torch.nn.functional.silu(x)
def _sigmoid(x):
    return torch.sigmoid(x)
def _layernorm(x, axis=-1, eps=1e-5):
    m = x.mean(dim=axis, keepdim=True)
    v = x.var(dim=axis, keepdim=True, unbiased=False)
    return (x - m) / torch.sqrt(v + eps)
def _scatter_add(tgt, idx, src, axis=0):
    return tgt.clone().index_add_(axis, idx, src)
def _segment_sum(src, seg, n):
    out = torch.zeros((n,) + src.shape[1:], dtype=src.dtype)
    return out.index_add_(0, seg, src)
def _pad(x, pw):
    flat = tuple(v for pair in reversed(pw) for v in pair)
    return torch.nn.functional.pad(x, flat)

kernel_name = 'parallel_sum__compressed_kv_cla__mixer_token_mlp__prompt'

def setup_inputs():

    _w = (lambda a: (lambda t: t.to(torch.bfloat16) if t.is_floating_point() else t)(torch.as_tensor(a)))
    def _A_setup():
        B, H, Sq, Sk, D, M = 1, 32, 2048, 2048, 128, 640
        Dc = 4 * D
        return {
            "x": _w((lambda *s: torch.randn(*s, dtype=torch.bfloat16) * 0.05)(B, Sq, M)),
            "c_kv": _w((lambda *s: torch.randn(*s, dtype=torch.bfloat16) * 0.2)(B, Sk, Dc)),
            "w_q": _w((lambda *s: torch.randn(*s, dtype=torch.bfloat16) * 6.4)(M, H, D) * (M ** -0.5)),
            "w_uk": _w((lambda *s: torch.randn(*s, dtype=torch.bfloat16) * 6.4)(Dc, H, D) * (Dc ** -0.5)),
            "w_uv": _w((lambda *s: torch.randn(*s, dtype=torch.bfloat16) * 0.2)(Dc, H, D) * (Dc ** -0.5)),
            "w_o": _w((lambda *s: torch.randn(*s, dtype=torch.bfloat16) * 0.2)(H, D, M) * ((H * D) ** -0.5)),
        }
    _A_in = _A_setup()

    def _B_setup():
        B, S, D, F = 1, 2048, 640, 1728
        return {
            "x": _w((lambda *s: torch.randn(*s, dtype=torch.bfloat16) * 0.05)(B, S, D)),
            "w1": _w((lambda *s: torch.randn(*s, dtype=torch.bfloat16) * 0.4)(S, F) * (S ** -0.5)),
            "b1": _w((lambda *s: torch.randn(*s, dtype=torch.bfloat16) * 3.2)(F) * 0.02),
            "w2": _w((lambda *s: torch.randn(*s, dtype=torch.bfloat16) * 0.2)(F, S) * (F ** -0.5)),
            "b2": _w((lambda *s: torch.randn(*s, dtype=torch.bfloat16) * 0.8)(S) * 0.02),
        }
    _B_in = _B_setup()

    return {
        "A_x": _A_in["x"],
        "A_c_kv": _A_in["c_kv"],
        "A_w_q": _A_in["w_q"],
        "A_w_uk": _A_in["w_uk"],
        "A_w_uv": _A_in["w_uv"],
        "A_w_o": _A_in["w_o"],
        "B_x": _B_in["x"],
        "B_w1": _B_in["w1"],
        "B_b1": _B_in["b1"],
        "B_w2": _B_in["w2"],
        "B_b2": _B_in["b2"],
    }

def reference(A_x, A_c_kv, A_w_q, A_w_uk, A_w_uv, A_w_o, B_x, B_w1, B_b1, B_w2, B_b2):
    def _A_ref(x, c_kv, w_q, w_uk, w_uv, w_o):
        B, Sq, M = x.shape[0], x.shape[1], x.shape[2]
        Sk = c_kv.shape[1]
        H, D = w_q.shape[1], w_q.shape[2]
        q = torch.einsum("bqm,mhd->bhqd", x, w_q)
        k = torch.einsum("bkc,chd->bhkd", c_kv, w_uk)
        v = torch.einsum("bkc,chd->bhkd", c_kv, w_uv)
        scores = torch.einsum("bhqd,bhkd->bhqk", q, k) * (D ** -0.5)
        off = Sk - Sq
        qi = torch.arange(Sq)[:, None]
        kj = torch.arange(Sk)[None, :]
        cmask = kj <= (qi + off)
        scores = torch.where(cmask[None, None], scores, -1e9)
        p = _softmax(scores, axis=-1)
        ctx = torch.einsum("bhqk,bhkd->bhqd", p, v)
        return torch.einsum("bhqd,hdm->bqm", ctx, w_o)

    def _B_ref(x, w1, b1, w2, b2):
        B, S, D = x.shape
        h = _layernorm(x, axis=-1)
        u = torch.einsum("bsd,sf->bdf", h, w1) + b1
        u = _gelu(u)
        y = torch.einsum("bdf,fs->bds", u, w2) + b2
        return (lambda x, *d: x.permute(*d))(y, 0, 2, 1)

    x = A_x
    xn = _layernorm(x, axis=-1)
    return x + _A_ref(xn, A_c_kv, A_w_q, A_w_uk, A_w_uv, A_w_o) + _B_ref(xn, B_w1, B_b1, B_w2, B_b2)
```

```python
class Asm:
    def __init__(self):
        self.lines = []
        self.lbl = 0
    def __call__(self, s):
        for ln in s.strip('\n').split('\n'):
            self.lines.append('    ' + ln.strip())
    def label(self, name):
        self.lines.append(name + ':')
    def newlabel(self, base='L'):
        self.lbl += 1
        return f'{base}_{self.lbl}'
    def raw(self, s):
        self.lines.append(s)
    def text(self):
        return '\n'.join(self.lines) + '\n'

def srd(a, d, base_lo, nbytes, off=0):
    if off:
        a(f's_add_u32 s{d}, s{base_lo}, 0x{off:x}')
        a(f's_addc_u32 s{d+1}, s{base_lo+1}, 0')
        a(f's_and_b32 s{d+1}, s{d+1}, 0xffff')
    else:
        a(f's_mov_b32 s{d}, s{base_lo}')
        a(f's_and_b32 s{d+1}, s{base_lo+1}, 0xffff')
    a(f's_mov_b32 s{d+2}, 0x{nbytes:x}')
    a(f's_mov_b32 s{d+3}, 0x00020000')
```

```python
from asmlib import *
from layout import *
import struct, math

def f2u(x):
    return struct.unpack('<I', struct.pack('<f', x))[0]

O = 0; S = 64; Q = 96; P = 128; F = 144
VKA = 208
VVA = 212
VGK = 216
VGV = 220
VM = 224; VL = 225; VT = 226
VQI = 236
STG = 32768

def gen_attn(a, name):
    a.raw('.p2align 8')
    a.label(name)
    done = a.newlabel('A_done')
    a('s_load_dwordx2 s[40:41], s[0:1], 104')
    a('s_cmp_ge_u32 s2, 512')
    a(f's_cbranch_scc1 {done}')
    a('s_and_b32 s20, s2, 255')
    a('s_and_b32 s21, s20, 7')
    a('s_lshr_b32 s20, s20, 3')
    a('s_and_b32 s22, s20, 3')
    a('s_lshl_b32 s21, s21, 2')
    a('s_add_u32 s22, s22, s21')
    a('s_lshr_b32 s23, s20, 2')
    a('s_sub_u32 s24, 15, s23')
    a('s_cmp_lt_u32 s2, 256')
    a('s_cselect_b32 s23, s24, s23')
    a('s_waitcnt lgkmcnt(0)')
    srd(a, 4, 40, BIG_SZ, Q_OFF)
    srd(a, 8, 40, BIG_SZ, K_OFF)
    srd(a, 12, 40, BIG_SZ, VT_OFF)
    srd(a, 16, 40, BIG_SZ, CTX_OFF)
    L = VT;
    a(f'v_and_b32 v{L}, 63, v0')
    a(f'v_lshrrev_b32 v{L+1}, 6, v0')
    a('s_nop 0')
    a(f'v_readfirstlane_b32 s25, v{L+1}')
    a(f'v_and_b32 v{L+2}, 31, v{L}')
    a('s_lshl_b32 s26, s23, 7')
    a('s_lshl_b32 s27, s25, 5')
    a('s_add_u32 s26, s26, s27')
    a(f'v_add_u32 v{L+3}, s26, v{L+2}')
    a(f'v_lshlrev_b32 v{L+3}, 13, v{L+3}')
    a(f'v_lshrrev_b32 v{L+4}, 5, v{L}')
    a(f'v_lshl_add_u32 v{L+3}, v{L+4}, 4, v{L+3}')
    a('s_lshl_b32 s27, s22, 8')
    a(f'v_add_u32 v{L+9}, s27, v{L+3}')
    for ks in range(8):
        a(f'buffer_load_dwordx4 v[{Q+4*ks}:{Q+4*ks+3}], v{L+9}, s[4:7], 0 offen offset:{ks*32}')
    a('s_lshl_b32 s27, s25, 5')
    a(f'v_add_u32 v{VQI}, s27, v{L+2}')
    a(f'v_lshlrev_b32 v{L+5}, 2, v{L+4}')
    a(f'v_sub_u32 v{VQI}, v{VQI}, v{L+5}')
    a(f'v_lshrrev_b32 v{L+5}, 4, v{L}')
    a(f'v_and_b32 v{L+6}, 15, v{L}')
    a('s_lshl_b32 s27, s25, 4')
    for j in range(4):
        a(f'v_add_u32 v{L+7}, {4*j}, v{L+5}')
        a(f'v_xor_b32 v{L+8}, v{L+6}, v{L+7}')
        a(f'v_add_u32 v{L+7}, s27, v{L+7}')
        a(f'v_lshlrev_b32 v{L+7}, 13, v{L+7}')
        a(f'v_lshl_add_u32 v{VGK+j}, v{L+8}, 4, v{L+7}')
    a('s_lshl_b32 s27, s22, 8')
    for j in range(4):
        a(f'v_add_u32 v{VGK+j}, s27, v{VGK+j}')
    a(f'v_lshrrev_b32 v{L+7}, 3, v{L}')
    a('s_lshl_b32 s27, s25, 5')
    a('s_lshl_b32 s28, s22, 7')
    a('s_add_u32 s27, s27, s28')
    a(f'v_add_u32 v{L+7}, s27, v{L+7}')
    a(f'v_and_b32 v{L+6}, 7, v{L}')
    for j in range(4):
        a(f'v_add_u32 v{L+8}, {4*(j&1)}, v{L+5}')
        a(f'v_xor_b32 v{L+8}, v{L+6}, v{L+8}')
        a(f'v_add_u32 v{VGV+j}, {8*j}, v{L+7}')
        a(f'v_lshlrev_b32 v{VGV+j}, 12, v{VGV+j}')
        a(f'v_lshl_add_u32 v{VGV+j}, v{L+8}, 4, v{VGV+j}')
    a(f'v_and_b32 v{L+5}, 15, v{L}')
    a(f'v_xor_b32 v{L+5}, v{L+5}, v{L+4}')
    a(f'v_lshlrev_b32 v{L+5}, 4, v{L+5}')
    a(f'v_lshl_add_u32 v{VKA}, v{L+2}, 8, v{L+5}')
    a(f'v_bfe_u32 v{L+5}, v{L}, 1, 3')
    a(f'v_xor_b32 v{L+5}, v{L+5}, v{L+4}')
    a(f'v_lshlrev_b32 v{L+5}, 4, v{L+5}')
    a(f'v_lshl_add_u32 v{VVA}, v{L+2}, 7, v{L+5}')
    KA = 240; VA = 248
    for ks in range(8):
        a(f'v_xor_b32 v{KA+ks}, {ks*32}, v{VKA}')
    for s in range(4):
        a(f'v_xor_b32 v{VA+s}, {s*32}, v{VVA}')
    for r in range(64):
        a(f'v_mov_b32 v{O+r}, 0')
    a(f'v_mov_b32 v{VM}, 0xf149f2ca')
    a(f'v_mov_b32 v{VL}, 0')
    c = (128 ** -0.5) * math.log2(math.e)
    a(f's_mov_b32 s30, 0x{f2u(c):x}')
    a('s_lshl_b32 s31, s25, 12')
    a('s_mov_b32 s32, 0')
    a('s_mov_b32 s33, 0')
    a('s_lshl_b32 s34, s23, 1')
    a('s_mov_b32 s35, 0')
    a('s_add_u32 s36, s34, 2')
    def loads(st):
        for j in range(4):
            a(f's_add_u32 m0, s31, {st*STG + j*1024}')
            a('s_nop 0')
            a(f'buffer_load_dwordx4 v{VGK+j}, s[8:11], s32 offen lds')
        for j in range(4):
            a(f's_add_u32 m0, s31, {st*STG + 16384 + j*1024}')
            a('s_nop 0')
            a(f'buffer_load_dwordx4 v{VGV+j}, s[12:15], s33 offen lds')
        a(f's_add_u32 s32, s32, {64*8192}')
        a('s_add_u32 s33, s33, 128')
    def compute(st, masked):
        so = st*STG
        for t in range(2):
            for ks in range(8):
                f = F + (t*8+ks)*4
                a(f'ds_read_b128 v[{f}:{f+3}], v{KA+ks} offset:{so + t*8192}')
        for t in range(2):
            for r in range(16):
                a(f'v_mov_b32 v{S+t*16+r}, 0')
        for t in range(2):
            a(f's_waitcnt lgkmcnt({8 if t == 0 else 0})')
            for ks in range(8):
                f = F + (t*8+ks)*4
                a(f'v_mfma_f32_32x32x16_bf16 v[{S+t*16}:{S+t*16+15}], v[{f}:{f+3}], v[{Q+4*ks}:{Q+4*ks+3}], v[{S+t*16}:{S+t*16+15}]')
        for dt in range(4):
            for s in range(4):
                f = F + (dt*4+s)*4
                a(f'ds_read_b128 v[{f}:{f+3}], v{VA+s} offset:{so + 16384 + dt*4096}')
        a('s_nop 7')
        T = VT + 1
        if masked:
            a(f'v_subrev_u32 v{T}, s37, v{VQI}')
            a(f'v_mov_b32 v{T+1}, 0xff800000')
            for t in range(2):
                for r in range(16):
                    cst = t*32 + 8*(r>>2) + (r&3)
                    a(f'v_cmp_gt_i32 vcc, {cst}, v{T}')
                    a('s_nop 1')
                    a(f'v_cndmask_b32 v{S+t*16+r}, v{S+t*16+r}, v{T+1}, vcc')
        a(f'v_max3_f32 v{T}, v{S}, v{S+1}, v{S+2}')
        for r in range(3, 31, 2):
            a(f'v_max3_f32 v{T}, v{T}, v{S+r}, v{S+r+1}')
        a(f'v_max_f32 v{T}, v{T}, v{S+31}')
        a(f'v_mov_b32 v{T+1}, v{T}')
        a('s_nop 1')
        a(f'v_permlane32_swap_b32 v{T+1}, v{T}')
        a(f'v_max3_f32 v{T}, v{T}, v{T+1}, v{VM}')
        a(f'v_sub_f32 v{T+1}, v{VM}, v{T}')
        a(f'v_mul_f32 v{T+1}, s30, v{T+1}')
        a(f'v_exp_f32 v{T+1}, v{T+1}')
        a(f'v_mov_b32 v{VM}, v{T}')
        a(f'v_mul_f32 v{T+2}, s30, v{T}')
        for r in range(32):
            a(f'v_fma_f32 v{S+r}, v{S+r}, s30, -v{T+2}')
        for r in range(32):
            a(f'v_exp_f32 v{S+r}, v{S+r}')
        a(f'v_mul_f32 v{VL}, v{VL}, v{T+1}')
        for r in range(64):
            a(f'v_mul_f32 v{O+r}, v{O+r}, v{T+1}')
        a(f'v_add_f32 v{T+3}, v{S}, v{S+1}')
        for r in range(2, 32):
            a(f'v_add_f32 v{T+3}, v{T+3}, v{S+r}')
        a(f'v_add_f32 v{VL}, v{VL}, v{T+3}')
        for p in range(16):
            a(f'v_cvt_pk_bf16_f32 v{P+p}, v{S+2*p}, v{S+2*p+1}')
        a('s_waitcnt lgkmcnt(0)')
        a('s_nop 1')
        for dt in range(4):
            for s in range(4):
                f = F + (dt*4+s)*4
                a(f'v_mfma_f32_32x32x16_bf16 v[{O+dt*16}:{O+dt*16+15}], v[{f}:{f+3}], v[{P+4*s}:{P+4*s+3}], v[{O+dt*16}:{O+dt*16+15}]')
        a('s_nop 7')
        a('s_nop 7')
    loads(0)
    loop = a.newlabel('A_loop'); fin = a.newlabel('A_fin')
    a.label(loop)
    for st in range(2):
        a('s_waitcnt vmcnt(0)')
        a('s_barrier')
        nl = a.newlabel('A_nl')
        a('s_add_u32 s38, s35, 1')
        a('s_cmp_ge_u32 s38, s36')
        a(f's_cbranch_scc1 {nl}')
        loads(1-st)
        a.label(nl)
        msk = a.newlabel('A_msk'); nxt = a.newlabel('A_nxt')
        a('s_cmp_ge_u32 s35, s34')
        a(f's_cbranch_scc1 {msk}')
        compute(st, False)
        a(f's_branch {nxt}')
        a.label(msk)
        a('s_sub_u32 s37, s35, s34')
        a('s_lshl_b32 s37, s37, 6')
        compute(st, True)
        a.label(nxt)
        a('s_add_u32 s35, s35, 1')
        a('s_cmp_ge_u32 s35, s36')
        a(f's_cbranch_scc1 {fin}')
    a(f's_branch {loop}')
    a.label(fin)
    T = VT + 1
    a(f'v_mov_b32 v{T}, v{VL}')
    a('s_nop 1')
    a(f'v_permlane32_swap_b32 v{T}, v{VL}')
    a(f'v_add_f32 v{T}, v{T}, v{VL}')
    a(f'v_rcp_f32 v{T}, v{T}')
    a('s_nop 0')
    for r in range(64):
        a(f'v_mul_f32 v{O+r}, v{O+r}, v{T}')
    for dt in range(4):
        for grp in range(2):
            d = F + (dt*2+grp)*4
            for p in range(4):
                a(f'v_cvt_pk_bf16_f32 v{d+p}, v{O+dt*16+grp*8+2*p}, v{O+dt*16+grp*8+2*p+1}')
            a(f'buffer_store_dwordx4 v[{d}:{d+3}], v{L+9}, s[16:19], 0 offen offset:{dt*64+grp*32}')
    a.label(done)
    a('s_endpgm')

gen_attn.launch = ('attn_kernel', 512, 256, 65536, 256, gen_attn)
```

```python
from asmlib import *
from layout import *

ACC = 0
FR = 64
VRA = 96
VTA = 98
VGR = 100
VGT = 104
L = 108
SLOT = 8192

def gen_final(a, name):
    a.raw('.p2align 8')
    a.label(name)
    done = a.newlabel('F_done')
    a('s_load_dwordx2 s[40:41], s[0:1], 0')
    a('s_load_dwordx2 s[42:43], s[0:1], 40')
    a('s_load_dwordx4 s[44:47], s[0:1], 72')
    a('s_load_dwordx2 s[48:49], s[0:1], 88')
    a('s_load_dwordx2 s[50:51], s[0:1], 104')
    a('s_cmp_ge_u32 s2, 320')
    a(f's_cbranch_scc1 {done}')
    a('s_and_b32 s20, s2, 7')
    a('s_lshr_b32 s21, s2, 3')
    a('s_and_b32 s22, s21, 3')
    a('s_lshl_b32 s20, s20, 2')
    a('s_add_u32 s22, s22, s20')
    a('s_lshl_b32 s22, s22, 6')
    a('s_lshr_b32 s23, s21, 2')
    a('s_lshl_b32 s23, s23, 6')
    a(f'v_and_b32 v{L}, 63, v0')
    a(f'v_lshrrev_b32 v{L+1}, 6, v0')
    a('s_nop 0')
    a(f'v_readfirstlane_b32 s24, v{L+1}')
    a('s_waitcnt lgkmcnt(0)')
    a('s_lshl_b32 s30, s24, 14')
    a(f'v_and_b32 v{L+2}, 31, v{L}')
    a(f'v_lshrrev_b32 v{L+3}, 5, v{L}')
    a(f'v_bfe_u32 v{L+4}, v{L}, 2, 2')
    a(f'v_xor_b32 v{L+4}, v{L+4}, v{L+3}')
    a(f'v_lshlrev_b32 v{L+4}, 4, v{L+4}')
    a(f'v_lshl_add_u32 v{L+4}, v{L+2}, 6, v{L+4}')
    a(f'v_add_u32 v{VRA}, s30, v{L+4}')
    a(f'v_xor_b32 v{VRA+1}, 32, v{VRA}')
    a(f'v_bfe_u32 v{L+4}, v{L}, 2, 2')
    a(f'v_lshl_add_u32 v{L+5}, v{L+3}, 2, v{L+4}')
    a(f'v_lshlrev_b32 v{L+5}, 7, v{L+5}')
    a(f'v_and_b32 v{L+6}, 1, v{L}')
    a(f'v_lshl_add_u32 v{L+5}, v{L+6}, 3, v{L+5}')
    a(f'v_add_u32 v{L+5}, s30, v{L+5}')
    a(f'v_bfe_u32 v{L+6}, v{L}, 4, 1')
    a(f'v_lshlrev_b32 v{L+6}, 1, v{L+6}')
    a(f'v_bfe_u32 v{L+7}, v{L}, 1, 1')
    a(f'v_add_u32 v{L+6}, v{L+6}, v{L+7}')
    a(f'v_bfe_u32 v{L+7}, v{L}, 3, 1')
    a(f'v_lshlrev_b32 v{L+7}, 2, v{L+7}')
    for tj in range(2):
        a(f'v_add_u32 v{L+8}, {4*tj}, v{L+6}')
        a(f'v_xor_b32 v{L+8}, v{L+8}, v{L+7}')
        a(f'v_lshl_add_u32 v{VTA+tj}, v{L+8}, 4, v{L+5}')
    for r in range(64):
        a(f'v_mov_b32 v{ACC+r}, 0')

    def phase(ph):
        if ph == 1:
            sR, sT = 8192, 1280
            srd(a, 4, 50, BIG_SZ, CTX_OFF)
            srd(a, 8, 42, 4096*1280)
            rbase, cbase = 's22', 's23'
            a('s_mov_b32 s34, 32')
        else:
            sR, sT = 3456, 4096
            srd(a, 4, 50, U_SZ, U_OFF)
            srd(a, 8, 44, 1728*4096)
            rbase, cbase = 's23', 's22'
            a('s_cmp_lt_u32 s24, 2')
            a('s_cselect_b32 s34, 14, 13')
        a(f'v_lshrrev_b32 v{L+4}, 2, v{L}')
        a(f'v_add_u32 v{L+4}, {rbase}, v{L+4}')
        a(f's_mov_b32 s26, {sR}')
        a(f'v_mul_lo_u32 v{L+4}, v{L+4}, s26')
        a(f'v_and_b32 v{L+5}, 3, v{L}')
        a(f'v_lshrrev_b32 v{L+6}, 4, v{L}')
        a(f'v_xor_b32 v{L+5}, v{L+5}, v{L+6}')
        a(f'v_lshl_add_u32 v{VGR}, v{L+5}, 4, v{L+4}')
        for j in range(1, 4):
            a(f'v_add_u32 v{VGR+j}, {16*j*sR}, v{VGR}')
        a(f'v_lshrrev_b32 v{L+4}, 3, v{L}')
        a(f's_mov_b32 s26, {sT}')
        a(f'v_mul_lo_u32 v{L+4}, v{L+4}, s26')
        a(f'v_and_b32 v{L+5}, 7, v{L}')
        a(f'v_bfe_u32 v{L+6}, v{L}, 4, 1')
        a(f'v_lshlrev_b32 v{L+6}, 2, v{L+6}')
        a(f'v_xor_b32 v{L+5}, v{L+5}, v{L+6}')
        a(f'v_lshl_add_u32 v{L+4}, v{L+5}, 4, v{L+4}')
        a(f's_lshl_b32 s25, {cbase}, 1')
        a(f'v_add_u32 v{VGT}, s25, v{L+4}')
        for j in range(1, 4):
            a(f'v_add_u32 v{VGT+j}, {8*j*sT}, v{VGT}')
        a('s_lshl_b32 s32, s24, 6')
        a(f's_mul_i32 s33, s24, {32*sT}')
        def loads(sl):
            for j in range(4):
                a(f's_add_u32 m0, s30, {sl*SLOT + j*1024}')
                a('s_nop 0')
                a(f'buffer_load_dwordx4 v{VGR+j}, s[4:7], s32 offen lds')
            for j in range(4):
                a(f's_add_u32 m0, s30, {sl*SLOT + 4096 + j*1024}')
                a('s_nop 0')
                a(f'buffer_load_dwordx4 v{VGT+j}, s[8:11], s33 offen lds')
            a('s_add_u32 s32, s32, 256')
            a(f's_add_u32 s33, s33, {128*sT}')
        loads(0); loads(1)
        a('s_mov_b32 s35, 0')
        loop = a.newlabel('F_loop'); end = a.newlabel('F_end')
        a.label(loop)
        for sl in range(2):
            a('s_waitcnt vmcnt(8)')
            for kk in range(2):
                fb = FR + kk*16
                for tj in range(2):
                    for h in range(2):
                        a(f'ds_read_b64_tr_b16 v[{fb+8+tj*4+h*2}:{fb+8+tj*4+h*2+1}], v{VTA+tj} offset:{sl*SLOT+4096+kk*2048+h*1024}')
                for ti in range(2):
                    a(f'ds_read_b128 v[{fb+ti*4}:{fb+ti*4+3}], v{VRA+kk} offset:{sl*SLOT+ti*2048}')
            a('s_waitcnt lgkmcnt(0)')
            loads(sl)
            for kk in range(2):
                fb = FR + kk*16
                for ti in range(2):
                    for tj in range(2):
                        rf = f'v[{fb+ti*4}:{fb+ti*4+3}]'
                        tf = f'v[{fb+8+tj*4}:{fb+8+tj*4+3}]'
                        if ph == 1:
                            acc = ACC + (tj*2+ti)*16; A, B = tf, rf
                        else:
                            acc = ACC + (ti*2+tj)*16; A, B = rf, tf
                        a(f'v_mfma_f32_32x32x16_bf16 v[{acc}:{acc+15}], {A}, {B}, v[{acc}:{acc+15}]')
            a('s_add_u32 s35, s35, 1')
            a('s_cmp_ge_u32 s35, s34')
            a(f's_cbranch_scc1 {end}')
        a(f's_branch {loop}')
        a.label(end)
        a('s_waitcnt vmcnt(0)')
    phase(1)
    phase(2)
    a('s_nop 15')
    a('s_barrier')
    a(f'v_lshlrev_b32 v{L+4}, 4, v{L}')
    a(f'v_add_u32 v{L+5}, s30, v{L+4}')
    for t in range(4):
        for q in range(4):
            a(f'ds_write_b128 v{L+5}, v[{ACC+t*16+q*4}:{ACC+t*16+q*4+3}] offset:{t*4096+q*1024}')
    a('s_waitcnt lgkmcnt(0)')
    a('s_barrier')
    a('s_lshl_b32 s25, s24, 12')
    a(f'v_add_u32 v{L+5}, s25, v{L+4}')
    for w in range(4):
        for q in range(4):
            a(f'ds_read_b128 v[{ACC+w*16+q*4}:{ACC+w*16+q*4+3}], v{L+5} offset:{w*16384+q*1024}')
    a('s_and_b32 s25, s24, 1')
    a('s_lshl_b32 s25, s25, 5')
    a('s_add_u32 s25, s25, s22')
    a(f'v_add_u32 v{L+6}, s25, v{L+2}')
    a(f'v_lshlrev_b32 v{L+7}, 1, v{L+6}')
    a(f'v_mul_u32_u24 v{L+6}, 1280, v{L+6}')
    a('s_lshr_b32 s25, s24, 1')
    a('s_lshl_b32 s25, s25, 5')
    a('s_add_u32 s25, s25, s23')
    a('s_lshl_b32 s25, s25, 1')
    a(f'v_lshl_add_u32 v{L+6}, v{L+3}, 3, v{L+6}')
    a(f'v_add_u32 v{L+6}, s25, v{L+6}')
    srd(a, 4, 40, 2048*1280)
    srd(a, 8, 46, 4096)
    srd(a, 12, 48, 2048*1280)
    X = 64
    for q in range(4):
        a(f'buffer_load_dwordx2 v[{X+2*q}:{X+2*q+1}], v{L+6}, s[4:7], 0 offen offset:{q*16}')
    a(f'buffer_load_ushort v{X+8}, v{L+7}, s[8:11], 0 offen')
    a('s_waitcnt lgkmcnt(0)')
    for r in range(16):
        a(f'v_add_f32 v{ACC+r}, v{ACC+r}, v{ACC+16+r}')
        a(f'v_add_f32 v{ACC+32+r}, v{ACC+32+r}, v{ACC+48+r}')
    for r in range(16):
        a(f'v_add_f32 v{ACC+r}, v{ACC+r}, v{ACC+32+r}')
    a('s_waitcnt vmcnt(0)')
    a(f'v_lshlrev_b32 v{X+8}, 16, v{X+8}')
    for q in range(4):
        a(f'v_lshlrev_b32 v{X+10}, 16, v{X+2*q}')
        a(f'v_and_b32 v{X+11}, 0xffff0000, v{X+2*q}')
        a(f'v_lshlrev_b32 v{X+12}, 16, v{X+2*q+1}')
        a(f'v_and_b32 v{X+13}, 0xffff0000, v{X+2*q+1}')
        for e in range(4):
            a(f'v_add_f32 v{ACC+4*q+e}, v{ACC+4*q+e}, v{X+8}')
            a(f'v_add_f32 v{ACC+4*q+e}, v{ACC+4*q+e}, v{X+10+e}')
        a(f'v_cvt_pk_bf16_f32 v{X+16+2*q}, v{ACC+4*q}, v{ACC+4*q+1}')
        a(f'v_cvt_pk_bf16_f32 v{X+17+2*q}, v{ACC+4*q+2}, v{ACC+4*q+3}')
    for q in range(4):
        a(f'buffer_store_dwordx2 v[{X+16+2*q}:{X+17+2*q}], v{L+6}, s[12:15], 0 offen offset:{q*16}')
    a.label(done)
    a('s_endpgm')

gen_final.launch = ('final_kernel', 320, 256, 65536, 128, gen_final)
```

```python
from asmlib import *
from layout import *
import struct

def f2u(x):
    return struct.unpack('<I', struct.pack('<f', x))[0]

STAGE = 24576

ACC = 0
FR = 128
VRA = 176
VTA = 180
VGR = 184
VGT = 188
VTMP = 190

def gemm_body(a, cfg):
    ks = cfg['ksteps']; sR = cfg['strideR']; sT = cfg['strideT']
    a(f'v_and_b32 v{VTMP}, 63, v0')
    a(f'v_lshrrev_b32 v{VTMP+1}, 6, v0')
    a(f's_nop 0')
    a(f'v_readfirstlane_b32 s24, v{VTMP+1}')
    a(f'v_lshrrev_b32 v{VTMP+2}, 2, v{VTMP}')
    a(f's_lshl_b32 s25, s24, 6')
    a(f's_add_u32 s25, s25, s22')
    a(f'v_add_u32 v{VTMP+2}, s25, v{VTMP+2}')
    a(f's_mov_b32 s26, {sR}')
    a(f'v_mul_lo_u32 v{VTMP+2}, v{VTMP+2}, s26')
    a(f'v_and_b32 v{VTMP+3}, 3, v{VTMP}')
    a(f'v_lshrrev_b32 v{VTMP+4}, 4, v{VTMP}')
    a(f'v_xor_b32 v{VTMP+3}, v{VTMP+3}, v{VTMP+4}')
    a(f'v_lshl_add_u32 v{VGR}, v{VTMP+3}, 4, v{VTMP+2}')
    for j in range(1, 4):
        a(f'v_add_u32 v{VGR+j}, {16*j*sR}, v{VGR}')
    a(f's_lshl_b32 s25, s24, 3')
    a(f'v_add_u32 v{VTMP+2}, s25, v{VTMP+4}')
    a(f's_mov_b32 s26, {sT}')
    a(f'v_mul_lo_u32 v{VTMP+2}, v{VTMP+2}, s26')
    a(f'v_and_b32 v{VTMP+3}, 15, v{VTMP}')
    a(f'v_lshlrev_b32 v{VTMP+5}, 2, v{VTMP+4}')
    a(f'v_xor_b32 v{VTMP+3}, v{VTMP+3}, v{VTMP+5}')
    a(f'v_lshl_add_u32 v{VTMP+2}, v{VTMP+3}, 4, v{VTMP+2}')
    a(f's_lshl_b32 s25, s23, 1')
    a(f'v_add_u32 v{VGT}, s25, v{VTMP+2}')
    a(f'v_add_u32 v{VGT+1}, {4*sT}, v{VGT}')
    a(f's_lshr_b32 s27, s24, 1')
    a(f's_and_b32 s28, s24, 1')
    a(f'v_and_b32 v{VTMP+2}, 31, v{VTMP}')
    a(f's_lshl_b32 s25, s27, 7')
    a(f'v_add_u32 v{VTMP+2}, s25, v{VTMP+2}')
    a(f'v_lshlrev_b32 v{VTMP+2}, 6, v{VTMP+2}')
    a(f'v_lshrrev_b32 v{VTMP+3}, 5, v{VTMP}')
    a(f'v_bfe_u32 v{VTMP+5}, v{VTMP}, 2, 2')
    a(f'v_xor_b32 v{VTMP+3}, v{VTMP+3}, v{VTMP+5}')
    a(f'v_lshl_add_u32 v{VRA}, v{VTMP+3}, 4, v{VTMP+2}')
    a(f'v_xor_b32 v{VRA+1}, 32, v{VRA}')
    a(f'v_add_u32 v{VRA+2}, {2*STAGE}, v{VRA}')
    a(f'v_add_u32 v{VRA+3}, {2*STAGE}, v{VRA+1}')
    a(f'v_bfe_u32 v{VTMP+5}, v{VTMP}, 2, 2')
    a(f'v_lshrrev_b32 v{VTMP+6}, 5, v{VTMP}')
    a(f'v_lshl_add_u32 v{VTMP+6}, v{VTMP+6}, 3, v{VTMP+5}')
    a(f'v_lshlrev_b32 v{VTMP+6}, 8, v{VTMP+6}')
    a(f'v_bfe_u32 v{VTMP+7}, v{VTMP}, 4, 1')
    a(f'v_lshlrev_b32 v{VTMP+7}, 1, v{VTMP+7}')
    a(f'v_bfe_u32 v{VTMP+8}, v{VTMP}, 1, 1')
    a(f'v_add_u32 v{VTMP+7}, v{VTMP+7}, v{VTMP+8}')
    a(f's_lshl_b32 s25, s28, 3')
    a(f'v_add_u32 v{VTMP+7}, s25, v{VTMP+7}')
    a(f'v_lshlrev_b32 v{VTMP+8}, 2, v{VTMP+5}')
    a(f'v_and_b32 v{VTMP+9}, 1, v{VTMP}')
    a(f'v_lshlrev_b32 v{VTMP+9}, 3, v{VTMP+9}')
    a(f'v_add_u32 v{VTMP+6}, v{VTMP+6}, v{VTMP+9}')
    for tj in range(2):
        a(f'v_add_u32 v{VTMP+9}, {4*tj}, v{VTMP+7}')
        a(f'v_xor_b32 v{VTMP+9}, v{VTMP+9}, v{VTMP+8}')
        a(f'v_lshl_add_u32 v{VTA+tj}, v{VTMP+9}, 4, v{VTMP+6}')
        a(f'v_add_u32 v{VTA+2+tj}, {2*STAGE}, v{VTA+tj}')
    a(f's_lshl_b32 s30, s24, 12')
    a(f's_lshl_b32 s31, s24, 11')
    a(f's_add_u32 s31, s31, 16384')
    for r in range(128):
        a(f'v_mov_b32 v{ACC+r}, 0')
    a('s_mov_b32 s32, 0')
    a('s_mov_b32 s33, 0')
    def issue_loads(st):
        for j in range(4):
            a(f's_add_u32 m0, s30, {st*STAGE + j*1024}')
            a('s_nop 0')
            a(f'buffer_load_dwordx4 v{VGR+j}, s[4:7], s32 offen lds')
        for j in range(2):
            a(f's_add_u32 m0, s31, {st*STAGE + j*1024}')
            a('s_nop 0')
            a(f'buffer_load_dwordx4 v{VGT+j}, s[8:11], s33 offen lds')
        a('s_add_u32 s32, s32, 64')
        a(f's_add_u32 s33, s33, {32*sT}')
    def compute(st):
        ra = VRA + (2 if st == 2 else 0)
        ta = VTA + (2 if st == 2 else 0)
        so = 0 if st == 2 else st*STAGE
        for kk in range(2):
            fb = FR + kk*24
            for tj in range(2):
                for h in range(2):
                    a(f'ds_read_b64_tr_b16 v[{fb+16+tj*4+h*2}:{fb+16+tj*4+h*2+1}], v{ta+tj} offset:{so+16384+kk*4096+h*1024}')
            for ti in range(4):
                a(f'ds_read_b128 v[{fb+ti*4}:{fb+ti*4+3}], v{ra+kk} offset:{so+ti*2048}')
        for kk in range(2):
            fb = FR + kk*24
            a(f's_waitcnt lgkmcnt({8 if kk == 0 else 0})')
            for ti in range(4):
                for tj in range(2):
                    acc = ACC + (ti*2+tj)*16
                    rf = f'v[{fb+ti*4}:{fb+ti*4+3}]'
                    tf = f'v[{fb+16+tj*4}:{fb+16+tj*4+3}]'
                    A, B = (tf, rf) if cfg['mode'] == 'RT' else (rf, tf)
                    a(f'v_mfma_f32_32x32x16_bf16 v[{acc}:{acc+15}], {A}, {B}, v[{acc}:{acc+15}]')
    issue_loads(0)
    issue_loads(1)
    a(f's_mov_b32 s34, 0')
    loop = a.newlabel('G_loop'); end = a.newlabel('G_end')
    a.label(loop)
    for st in range(3):
        a('s_waitcnt vmcnt(6)')
        a('s_barrier')
        skip = a.newlabel('G_skip'); cont = a.newlabel('G_cont')
        a(f's_add_u32 s35, s34, 2')
        a(f's_cmp_ge_u32 s35, {ks}')
        a(f's_cbranch_scc1 {skip}')
        issue_loads((st+2) % 3)
        compute(st)
        a(f's_branch {cont}')
        a.label(skip)
        compute(st)
        a('s_waitcnt vmcnt(0)')
        a.label(cont)
        a('s_add_u32 s34, s34, 1')
        a(f's_cmp_ge_u32 s34, {ks}')
        a(f's_cbranch_scc1 {end}')
    a(f's_branch {loop}')
    a.label(end)
    a('s_nop 15')

def pack8(a, dst, src):
    for p in range(4):
        a(f'v_cvt_pk_bf16_f32 v{dst+p}, v{src+2*p}, v{src+2*p+1}')

def epi_RT(a, stride_out, gelu=False):
    a(f'v_and_b32 v{VTMP+2}, 31, v{VTMP}')
    a(f's_lshl_b32 s25, s27, 7')
    a(f's_add_u32 s25, s25, s22')
    a(f'v_add_u32 v{VTMP+2}, s25, v{VTMP+2}')
    a(f's_mov_b32 s26, {stride_out}')
    a(f'v_mul_lo_u32 v{VTMP+2}, v{VTMP+2}, s26')
    a(f'v_lshrrev_b32 v{VTMP+3}, 5, v{VTMP}')
    a(f'v_lshlrev_b32 v{VTMP+3}, 4, v{VTMP+3}')
    a(f's_lshl_b32 s25, s28, 6')
    a(f's_add_u32 s25, s25, s23')
    a(f's_lshl_b32 s25, s25, 1')
    a(f'v_add3_u32 v{VTMP+2}, v{VTMP+2}, v{VTMP+3}, s25')
    if gelu:
        a(f'v_lshrrev_b32 v{VTMP+3}, 5, v{VTMP}')
        a(f'v_lshlrev_b32 v{VTMP+3}, 3, v{VTMP+3}')
        a(f'v_add_u32 v{VTMP+3}, s25, v{VTMP+3}')
        B = FR
        for tj in range(2):
            for q in range(4):
                a(f'buffer_load_dwordx2 v[{B+(tj*4+q)*2}:{B+(tj*4+q)*2+1}], v{VTMP+3}, s[16:19], 0 offen offset:{tj*64+q*16}')
        a('s_waitcnt vmcnt(0)')
        BF = FR + 16
        for g in range(8):
            a(f'v_lshlrev_b32 v{BF+4*g}, 16, v{B+2*g}')
            a(f'v_and_b32 v{BF+4*g+1}, 0xffff0000, v{B+2*g}')
            a(f'v_lshlrev_b32 v{BF+4*g+2}, 16, v{B+2*g+1}')
            a(f'v_and_b32 v{BF+4*g+3}, 0xffff0000, v{B+2*g+1}')
        a(f's_mov_b32 s36, 0x{f2u(0.7978845608028654*0.044715):x}')
        a(f's_mov_b32 s37, 0x{f2u(0.7978845608028654):x}')
        a(f's_mov_b32 s38, 0x{f2u(-2.0*1.4426950408889634):x}')
    T0 = VTMP + 4
    for ti in range(4):
        for tj in range(2):
            acc = ACC + (ti*2+tj)*16
            if gelu:
                BF = FR + 16
                for r in range(16):
                    x = f'v{acc+r}'
                    t = f'v{T0}'; t2 = f'v{T0+1}'
                    a(f'v_cvt_pk_bf16_f32 {x}, {x}, {x}')
                    a(f'v_lshlrev_b32 {x}, 16, {x}')
                    a(f'v_add_f32 {x}, {x}, v{BF+tj*16+r}')
                    a(f'v_cvt_pk_bf16_f32 {x}, {x}, {x}')
                    a(f'v_lshlrev_b32 {x}, 16, {x}')
                    a(f'v_mul_f32 {t}, {x}, {x}')
                    a(f'v_fma_f32 {t}, {t}, s36, s37' if False else f'v_mul_f32 {t}, s36, {t}')
                    a(f'v_add_f32 {t}, s37, {t}')
                    a(f'v_mul_f32 {t}, {t}, {x}')
                    a(f'v_mul_f32 {t}, s38, {t}')
                    a(f'v_exp_f32 {t}, {t}')
                    a('s_nop 0')
                    a(f'v_add_f32 {t}, 1.0, {t}')
                    a(f'v_rcp_f32 {t}, {t}')
                    a('s_nop 0')
                    a(f'v_mul_f32 {x}, {x}, {t}')
            for grp in range(2):
                d = FR + 64 - 8 + grp*4 if False else VTMP+6+0
                dreg = 200 + ((ti*2+tj)*2+grp) % 4 * 4
                pack8(a, dreg, acc + grp*8)
                a(f'buffer_store_dwordx4 v[{dreg}:{dreg+3}], v{VTMP+2}, s[12:15], 0 offen offset:{tj*64+grp*32}')
        a(f'v_add_u32 v{VTMP+2}, {32*stride_out}, v{VTMP+2}')

def epi_TR(a, stride_out):
    a(f'v_and_b32 v{VTMP+2}, 31, v{VTMP}')
    a(f's_lshl_b32 s25, s28, 6')
    a(f's_add_u32 s25, s25, s23')
    a(f'v_add_u32 v{VTMP+2}, s25, v{VTMP+2}')
    a(f's_mov_b32 s26, {stride_out}')
    a(f'v_mul_lo_u32 v{VTMP+2}, v{VTMP+2}, s26')
    a(f'v_lshrrev_b32 v{VTMP+3}, 5, v{VTMP}')
    a(f'v_lshlrev_b32 v{VTMP+3}, 4, v{VTMP+3}')
    a(f's_lshl_b32 s25, s27, 7')
    a(f's_add_u32 s25, s25, s22')
    a(f's_lshl_b32 s25, s25, 1')
    a(f'v_add3_u32 v{VTMP+2}, v{VTMP+2}, v{VTMP+3}, s25')
    a(f'v_add_u32 v{VTMP+3}, {32*stride_out}, v{VTMP+2}')
    for ti in range(4):
        for tj in range(2):
            acc = ACC + (ti*2+tj)*16
            for grp in range(2):
                dreg = 200 + ((ti*2+tj)*2+grp) % 4 * 4
                pack8(a, dreg, acc + grp*8)
                a(f'buffer_store_dwordx4 v[{dreg}:{dreg+3}], v{VTMP+2+tj}, s[12:15], 0 offen offset:{ti*64+grp*32}')

def gen_gemm1(a, name):
    a.raw('.p2align 8')
    a.label(name)
    done = a.newlabel('G1_done')
    LQ = a.newlabel('G1_Q'); LK = a.newlabel('G1_K'); LV = a.newlabel('G1_V')
    a('s_load_dwordx4 s[40:43], s[0:1], 8')
    a('s_load_dwordx4 s[44:47], s[0:1], 24')
    a('s_load_dwordx4 s[48:51], s[0:1], 56')
    a('s_load_dwordx2 s[52:53], s[0:1], 104')
    a('s_cmp_ge_u32 s2, 816')
    a(f's_cbranch_scc1 {done}')
    a('s_waitcnt lgkmcnt(0)')
    a('s_cmp_ge_u32 s2, 48')
    a(f's_cbranch_scc1 {LQ}')
    a('s_cmp_ge_u32 s2, 42')
    a(f's_cbranch_scc1 {done}')
    a('s_mul_hi_u32 s20, s2, 0x55555556')
    a('s_mul_i32 s21, s20, 3')
    a('s_sub_u32 s21, s2, s21')
    a('s_lshl_b32 s22, s21, 8')
    a('s_lshl_b32 s23, s20, 7')
    srd(a, 4, 52, HT_SZ, HT_OFF)
    srd(a, 8, 48, 2048*1728*2)
    srd(a, 12, 52, U_SZ, U_OFF)
    srd(a, 16, 50, 1728*2)
    gemm_body(a, dict(ksteps=64, strideR=4096, strideT=3456, mode='RT'))
    a('s_lshl_b32 s25, s27, 7')
    a('s_add_u32 s25, s25, s22')
    a('s_cmp_ge_u32 s25, 640')
    a(f's_cbranch_scc1 {done}')
    a('s_lshl_b32 s25, s28, 6')
    a('s_add_u32 s25, s25, s23')
    a('s_cmp_ge_u32 s25, 1728')
    a(f's_cbranch_scc1 {done}')
    epi_RT(a, 3456, gelu=True)
    a('s_endpgm')
    def decode(base):
        a(f's_sub_u32 s20, s2, {base}')
        a('s_and_b32 s21, s20, 7')
        a('s_lshr_b32 s20, s20, 3')
        a('s_and_b32 s23, s20, 3')
        a('s_lshl_b32 s21, s21, 2')
        a('s_add_u32 s23, s23, s21')
        a('s_lshl_b32 s23, s23, 7')
        a('s_lshr_b32 s22, s20, 2')
        a('s_lshl_b32 s22, s22, 8')
    a.label(LQ)
    a('s_cmp_ge_u32 s2, 304')
    a(f's_cbranch_scc1 {LK}')
    decode(48)
    srd(a, 4, 52, XN_SZ, XN_OFF)
    srd(a, 8, 42, 640*8192)
    srd(a, 12, 52, BIG_SZ, Q_OFF)
    gemm_body(a, dict(ksteps=20, strideR=1280, strideT=8192, mode='RT'))
    epi_RT(a, 8192)
    a('s_endpgm')
    a.label(LK)
    a('s_cmp_ge_u32 s2, 560')
    a(f's_cbranch_scc1 {LV}')
    decode(304)
    srd(a, 4, 40, 2048*1024)
    srd(a, 8, 44, 512*8192)
    srd(a, 12, 52, BIG_SZ, K_OFF)
    gemm_body(a, dict(ksteps=16, strideR=1024, strideT=8192, mode='RT'))
    epi_RT(a, 8192)
    a('s_endpgm')
    a.label(LV)
    decode(560)
    srd(a, 4, 40, 2048*1024)
    srd(a, 8, 46, 512*8192)
    srd(a, 12, 52, BIG_SZ, VT_OFF)
    gemm_body(a, dict(ksteps=16, strideR=1024, strideT=8192, mode='TR'))
    epi_TR(a, 4096)
    a.label(done)
    a('s_endpgm')
```

```python
from asmlib import *
from layout import *

def rnd(a, dst, src):
    a(f'v_cvt_pk_bf16_f32 {dst}, {src}, {src}')
    a(f'v_lshlrev_b32 {dst}, 16, {dst}')

def reduce4(a, regs, tmp):
    for off in (0x041F, 0x081F, 0x101F, 0x201F, 0x401F):
        for i, r in enumerate(regs):
            a(f'ds_swizzle_b32 v{tmp+i}, v{r} offset:0x{off:x}')
        a('s_waitcnt lgkmcnt(0)')
        for i, r in enumerate(regs):
            a(f'v_add_f32 v{r}, v{r}, v{tmp+i}')
    a('s_nop 1')
    for i, r in enumerate(regs):
        a(f'v_readlane_b32 s{40+2*i}, v{r}, 0')
        a(f'v_readlane_b32 s{41+2*i}, v{r}, 32')
    a('s_nop 1')
    for i, r in enumerate(regs):
        a(f'v_mov_b32 v{r}, s{40+2*i}')
        a(f'v_add_f32 v{r}, s{41+2*i}, v{r}')

def layernorm4(a, X, S, T):
    inv = 1.0/640.0
    import struct
    invh = struct.unpack('<I', struct.pack('<f', inv))[0]
    epsh = struct.unpack('<I', struct.pack('<f', 1e-5))[0]
    for i in range(4):
        a(f'v_add_f32 v{S+i}, v{X+10*i}, v{X+10*i+1}')
        for j in range(2, 10):
            a(f'v_add_f32 v{S+i}, v{S+i}, v{X+10*i+j}')
    reduce4(a, [S+i for i in range(4)], T)
    M = S + 4
    for i in range(4):
        a(f'v_mul_f32 v{M+i}, 0x{invh:x}, v{S+i}')
    for i in range(4):
        a(f'v_sub_f32 v{T}, v{X+10*i}, v{M+i}')
        a(f'v_mul_f32 v{S+i}, v{T}, v{T}')
        for j in range(1, 10):
            a(f'v_sub_f32 v{T}, v{X+10*i+j}, v{M+i}')
            a(f'v_fmac_f32 v{S+i}, v{T}, v{T}')
    reduce4(a, [S+i for i in range(4)], T)
    for i in range(4):
        a(f'v_mul_f32 v{S+i}, 0x{invh:x}, v{S+i}')
        rnd(a, f'v{S+i}', f'v{S+i}')
        a(f'v_add_f32 v{S+i}, 0x{epsh:x}, v{S+i}')
        rnd(a, f'v{S+i}', f'v{S+i}')
        a(f'v_sqrt_f32 v{S+i}, v{S+i}')
        a('s_nop 0')
        rnd(a, f'v{S+i}', f'v{S+i}')
        a(f'v_rcp_f32 v{S+i}, v{S+i}')
        rnd(a, f'v{M+i}', f'v{M+i}')
    for i in range(4):
        for j in range(10):
            r = f'v{X+10*i+j}'
            a(f'v_sub_f32 {r}, {r}, v{M+i}')
            rnd(a, r, r)
            a(f'v_mul_f32 {r}, {r}, v{S+i}')
            rnd(a, r, r)

def gen_ln(a, name):
    a.raw('.p2align 8')
    a.label(name)
    done = a.newlabel('LN_done')
    a(f's_cmp_ge_u32 s2, 128')
    a(f's_cbranch_scc1 {done}')
    a('s_load_dwordx2 s[16:17], s[0:1], 0')
    a('s_load_dwordx2 s[18:19], s[0:1], 104')
    a('v_and_b32 v1, 63, v0')
    a('v_lshrrev_b32 v2, 6, v0')
    a('s_lshl_b32 s3, s2, 4')
    a('v_lshlrev_b32 v3, 2, v2')
    a('v_add_u32 v3, s3, v3')
    a('v_mul_u32_u24 v3, 1280, v3')
    a('v_lshl_add_u32 v3, v1, 2, v3')
    a('v_add_u32 v4, 2560, v3')
    a('s_waitcnt lgkmcnt(0)')
    srd(a, 4, 16, XN_SZ)
    srd(a, 8, 18, XN_SZ, XN_OFF)
    srd(a, 12, 18, HT_SZ, HT_OFF)
    D = 10
    X = 32
    S = 72
    T = 80
    for i in range(4):
        for j in range(5):
            ar = 'v3' if i < 2 else 'v4'
            a(f'buffer_load_dword v{D+5*i+j}, {ar}, s[4:7], 0 offen offset:{(i%2)*1280+j*256}')
    a('s_waitcnt vmcnt(0)')
    for i in range(4):
        for j in range(5):
            a(f'v_lshlrev_b32 v{X+10*i+2*j}, 16, v{D+5*i+j}')
            a(f'v_and_b32 v{X+10*i+2*j+1}, 0xffff0000, v{D+5*i+j}')
    layernorm4(a, X, S, T)
    for i in range(4):
        for j in range(5):
            a(f'v_cvt_pk_bf16_f32 v{D+5*i+j}, v{X+10*i+2*j}, v{X+10*i+2*j+1}')
    for i in range(4):
        for j in range(5):
            ar = 'v3' if i < 2 else 'v4'
            a(f'buffer_store_dword v{D+5*i+j}, {ar}, s[8:11], 0 offen offset:{(i%2)*1280+j*256}')
    layernorm4(a, X, S, T)
    a('v_lshlrev_b32 v5, 6, v1')
    a('v_lshl_add_u32 v5, v2, 3, v5')
    for i in range(4):
        for j in range(5):
            a(f'ds_write_b16_d16_hi v5, v{X+10*i+2*j} offset:{j*4096+i*2}')
            a(f'ds_write_b16_d16_hi v5, v{X+10*i+2*j+1} offset:{j*4096+32+i*2}')
    a('s_waitcnt lgkmcnt(0)')
    a('s_barrier')
    a('v_lshlrev_b32 v6, 5, v0')
    a('v_lshlrev_b32 v7, 12, v0')
    a('s_lshl_b32 s3, s2, 5')
    a('v_add_u32 v7, s3, v7')
    a('ds_read_b128 v[8:11], v6')
    a('ds_read_b128 v[12:15], v6 offset:16')
    a('ds_read_b128 v[16:19], v6 offset:8192')
    a('ds_read_b128 v[20:23], v6 offset:8208')
    a('ds_read_b128 v[24:27], v6 offset:16384')
    a('ds_read_b128 v[28:31], v6 offset:16400')
    a('v_add_u32 v5, 0x100000, v7')
    a('v_add_u32 v6, 0x200000, v7')
    a('s_waitcnt lgkmcnt(0)')
    a('buffer_store_dwordx4 v[8:11], v7, s[12:15], 0 offen')
    a('buffer_store_dwordx4 v[12:15], v7, s[12:15], 0 offen offset:16')
    a('buffer_store_dwordx4 v[16:19], v5, s[12:15], 0 offen')
    a('buffer_store_dwordx4 v[20:23], v5, s[12:15], 0 offen offset:16')
    a('v_cmp_gt_u32 vcc, 128, v0')
    a('s_and_saveexec_b64 s[20:21], vcc')
    a('buffer_store_dwordx4 v[24:27], v6, s[12:15], 0 offen')
    a('buffer_store_dwordx4 v[28:31], v6, s[12:15], 0 offen offset:16')
    a('s_mov_b64 exec, s[20:21]')
    a.label(done)
    a('s_endpgm')
```

```python
XN_OFF  = 0x0
XN_SZ   = 2048*640*2
HT_OFF  = 0x280000
HT_SZ   = 768*4096
Q_OFF   = 0x1000000
K_OFF   = 0x2000000
VT_OFF  = 0x3000000
U_OFF   = 0x4000000
U_SZ    = 640*1728*2
CTX_OFF = 0x5000000
BIG_SZ  = 2048*4096*2
CKV_OFF = 0x600000
CKV_SZ = 2048*512*2
```

```python
import sys
from asmlib import *
from k_ln import gen_ln
from k_gemm import gen_gemm1
NAME = 'parallel_sum__compressed_kv_cla__mixer_token_mlp__prompt'

def kd(name, vgpr, sgpr=102):
    acc = (vgpr + 3)//4*4
    return f'''.amdhsa_kernel {name}
  .amdhsa_next_free_vgpr {vgpr}
  .amdhsa_next_free_sgpr {sgpr}
  .amdhsa_accum_offset {acc}
  .amdhsa_group_segment_fixed_size 0
  .amdhsa_kernarg_size 112
  .amdhsa_user_sgpr_count 2
  .amdhsa_user_sgpr_kernarg_segment_ptr 1
  .amdhsa_system_sgpr_workgroup_id_x 1
.end_amdhsa_kernel
'''

def main(which):
    hdr = open('cdna_kernels/%s.s.ref' % NAME).read().split('; Override')[0]
    kernels = []
    kernels.append(('ln_kernel', 128, 256, 24576, 96, gen_ln))
    kernels.append(('gemm1_kernel', 816, 256, 73728, 216, gen_gemm1))
    if 'attn' in which:
        from k_attn import gen_attn
        kernels.append(gen_attn.launch)
    if 'final' in which:
        from k_final import gen_final
        kernels.append(gen_final.launch)
    out = hdr
    for k in kernels:
        out += f'; @launch kernel={k[0]} grid=({k[1]},1,1) block=({k[2]},1,1) lds={k[3]}\n'
    out += '.amdgcn_target "amdgcn-amd-amdhsa--gfx950"\n.text\n'
    a = Asm()
    for k in kernels:
        a.raw(f'.globl {k[0]}')
        a.raw(f'.type {k[0]},@function')
        k[5](a, k[0])
    out += a.text()
    out += '.section .rodata,"a"\n'
    for k in kernels:
        out += '.p2align 6\n' + kd(k[0], k[4])
    open('cdna_kernels/%s.s' % NAME, 'w').write(out)

if __name__ == '__main__':
    main(sys.argv[1:])
```

```python
from asmlib import *
from layout import *
import struct, math, os
ST = os.environ.get('STAMP')
def f2u(x):
    return struct.unpack('<I', struct.pack('<f', x))[0]

O = 0; SA = 64; SB = 96; Q = 128; P = 160; F0 = 176; F1 = 208
VKA = 240
VKR = 241; VVR = 242; VTID = 243
VGK = 244; VGV = 246
VM = 248; VL = 249; VMC = 250; VQI = 251; T = 252
KSL = 16384

def interleave(a, mf, fl, lead=0):
    idx = 0
    while idx < min(lead, len(fl)):
        a(fl[idx]); idx += 1
    n = len(mf); rem = len(fl) - idx; base = idx
    for i, x in enumerate(mf):
        a(x)
        tgt = base + ((i+1)*rem + n - 1)//n
        while idx < tgt:
            a(fl[idx]); idx += 1

def gen_attn(a, name):
    a.raw('.p2align 8')
    a.label(name)
    done = a.newlabel('A_done')
    a('s_load_dwordx2 s[40:41], s[0:1], 104')
    a('s_cmp_ge_u32 s2, 256')
    a(f's_cbranch_scc1 {done}')
    a(f'v_mov_b32 v{VTID}, v0')
    a('s_mov_b32 s60, 0')
    if ST: a('s_memtime s[70:71]')
    a('s_waitcnt lgkmcnt(0)')
    PASS = a.newlabel('A_pass')
    a.label(PASS)
    a('s_and_b32 s20, s2, 255')
    a('s_and_b32 s21, s20, 7')
    a('s_lshr_b32 s20, s20, 3')
    a('s_and_b32 s22, s20, 3')
    a('s_lshl_b32 s21, s21, 2')
    a('s_add_u32 s22, s22, s21')
    a('s_lshr_b32 s23, s20, 2')
    a('s_sub_u32 s24, 15, s23')
    a('s_cmp_eq_u32 s60, 0')
    a('s_cselect_b32 s23, s24, s23')
    srd(a, 4, 40, BIG_SZ, Q_OFF)
    srd(a, 8, 40, BIG_SZ, K_OFF)
    srd(a, 12, 40, BIG_SZ, VT_OFF)
    srd(a, 16, 40, BIG_SZ, CTX_OFF)
    L = F0
    a(f'v_and_b32 v{L}, 63, v{VTID}')
    a(f'v_lshrrev_b32 v{L+1}, 6, v{VTID}')
    a('s_nop 0')
    a(f'v_readfirstlane_b32 s25, v{L+1}')
    a('s_lshr_b32 s66, s25, 2')
    a('s_and_b32 s25, s25, 3')
    a(f'v_and_b32 v{L+2}, 31, v{L}')
    a(f'v_lshrrev_b32 v{L+4}, 5, v{L}')
    a(f'v_bfe_u32 v{L+5}, v{L}, 3, 1')
    a(f'v_xor_b32 v{L+5}, v{L+5}, v{L+4}')
    a(f'v_lshlrev_b32 v{L+5}, 4, v{L+5}')
    a(f'v_lshl_add_u32 v{VKA}, v{L+2}, 5, v{L+5}')
    a('s_lshl_b32 s26, s23, 7')
    a('s_lshl_b32 s27, s25, 5')
    a('s_add_u32 s26, s26, s27')
    a('s_lshl_b32 s27, s22, 14')
    a('s_add_u32 s27, s27, s26')
    a('s_lshl_b32 s39, s27, 5')
    a(f'v_add_u32 v{L+9}, s39, v{VKA}')
    for ks in range(8):
        a(f's_mov_b32 s28, {ks*65536}')
        a(f'buffer_load_dwordx4 v[{Q+4*ks}:{Q+4*ks+3}], v{L+9}, s[4:7], s28 offen')
    a('s_lshl_b32 s27, s25, 5')
    a(f'v_add_u32 v{VQI}, s27, v{L+2}')
    a(f'v_lshlrev_b32 v{L+5}, 2, v{L+4}')
    a(f'v_sub_u32 v{VQI}, v{VQI}, v{L+5}')
    a(f'v_lshlrev_b32 v{L+5}, 4, v{L}')
    for j in range(2):
        a('s_lshl_b32 s27, s22, 3')
        a('s_lshl_b32 s28, s25, 1')
        a('s_add_u32 s27, s27, s28')
        a(f's_add_u32 s27, s27, {j}')
        a('s_lshl_b32 s27, s27, 16')
        a(f'v_add_u32 v{VGK+j}, s27, v{L+5}')
    a('s_lshl_b32 s27, s25, 12')
    a('s_lshl_b32 s28, s22, 7')
    a('s_add_u32 s27, s27, s28')
    a('s_lshl_b32 s27, s27, 5')
    a(f'v_add_u32 v{VGV}, s27, v{L+5}')
    for r in range(64):
        a(f'v_mov_b32 v{O+r}, 0')
    a(f'v_mov_b32 v{VM}, 0xf149f2ca')
    a(f'v_mov_b32 v{VL}, 0')
    a(f'v_mov_b32 v{VMC}, 0')
    c = (128 ** -0.5) * math.log2(math.e)
    a(f's_mov_b32 s30, 0x{f2u(c):x}')
    a(f's_mov_b32 s29, 0x{f2u(16.0/c):x}')
    a('s_lshl_b32 s31, s25, 12')
    a('s_mov_b32 s32, 0')
    a('s_mov_b32 s33, 0')
    a('s_lshl_b32 s34, s23, 1')
    a('s_add_u32 s36, s34, 2')

    def rot(reg, n=3):
        return [f's_add_u32 {reg}, {reg}, {KSL}', f's_cmp_eq_u32 {reg}, {n*KSL}', f's_cselect_b32 {reg}, 0, {reg}']
    def loadK():
        out = ['s_add_u32 s65, s31, s61']
        for j in range(2):
            out += [f's_add_u32 m0, s65, {j*2048}', 's_nop 0', f'buffer_load_dwordx4 v{VGK+j}, s[8:11], s32 offen lds',
                    f'buffer_load_dwordx4 v{VGK+j}, s[8:11], s32 offen offset:1024 lds']
        out.append('s_add_u32 s32, s32, 2048')
        return out + rot('s61', 4)
    def loadV():
        out = ['s_add_u32 s65, s31, s62']
        out += [f's_add_u32 m0, s65, {4*KSL}', 's_nop 0']
        for j in range(4):
            out += [f'buffer_load_dwordx4 v{VGV}, s[12:15], s33 offen offset:{j*1024} lds']
        out.append('s_add_u32 s33, s33, 524288')
        return out + rot('s62')
    def kreads(slot, t):
        f0 = F0 if t == 0 else F1
        return [f'ds_read_b128 v[{f0+4*ks}:{f0+4*ks+3}], v{VKR} offset:{ks*2048+t*1024}' for ks in range(8)]
    def vreads(slot, half):
        f0 = F0 if half == 0 else F1
        out = []
        for s2 in range(2):
            s = half*2 + s2
            for dt in range(4):
                f = f0 + (s2*4+dt)*4
                out.append(f'ds_read_b128 v[{f}:{f+3}], v{VVR} offset:{s*4096+dt*1024}')
        return out
    def qk(Sn, t):
        f0 = F0 if t == 0 else F1
        out = []
        for ks in range(8):
            cin = '0' if ks == 0 else f'v[{Sn+t*16}:{Sn+t*16+15}]'
            out.append(f'v_mfma_f32_32x32x16_bf16 v[{Sn+t*16}:{Sn+t*16+15}], v[{f0+4*ks}:{f0+4*ks+3}], v[{Q+4*ks}:{Q+4*ks+3}], {cin}')
        return out
    def pv(half):
        f0 = F0 if half == 0 else F1
        out = []
        for s2 in range(2):
            s = half*2 + s2
            for dt in range(4):
                f = f0 + (s2*4+dt)*4
                out.append(f'v_mfma_f32_32x32x16_bf16 v[{O+dt*16}:{O+dt*16+15}], v[{f}:{f+3}], v[{P+4*s}:{P+4*s+3}], v[{O+dt*16}:{O+dt*16+15}]')
        return out
    def exp_part(Sc, t):
        out = []
        b = Sc + t*16; pb = P + t*8
        for r in range(16):
            out.append(f'v_fma_f32 v{b+r}, v{b+r}, s30, -v{VMC}')
            if r >= 2:
                out.append(f'v_exp_f32 v{b+r-2}, v{b+r-2}')
            if r >= 5 and (r & 1) == 1:
                p = (r-5)//2
                out.append(f'v_cvt_pk_bf16_f32 v{pb+p}, v{b+2*p}, v{b+2*p+1}')
        out.append(f'v_exp_f32 v{b+14}, v{b+14}')
        out.append(f'v_exp_f32 v{b+15}, v{b+15}')
        for p in range((15-5)//2 + 1, 8):
            out.append(f'v_cvt_pk_bf16_f32 v{pb+p}, v{b+2*p}, v{b+2*p+1}')
        return out
    def sum_part(Sc):
        out = [f'v_add_f32 v{T}, v{Sc}, v{Sc+1}']
        for r in range(2, 32):
            out.append(f'v_add_f32 v{T}, v{T}, v{Sc+r}')
        out.append(f'v_add_f32 v{VL}, v{VL}, v{T}')
        return out
    def max_part(Sn, masked):
        out = []
        if masked:
            out.append(f'v_subrev_u32 v{T}, s37, v{VQI}')
            out.append(f'v_mov_b32 v{T+1}, 0xff800000')
            for t in range(2):
                for r in range(16):
                    cst = t*32 + 8*(r>>2) + (r&3)
                    out.append(f'v_cmp_gt_i32 vcc, {cst}, v{T}')
                    out.append('s_nop 1')
                    out.append(f'v_cndmask_b32 v{Sn+t*16+r}, v{Sn+t*16+r}, v{T+1}, vcc')
        out.append(f'v_max3_f32 v{T}, v{Sn}, v{Sn+1}, v{Sn+2}')
        for r in range(3, 31, 2):
            out.append(f'v_max3_f32 v{T}, v{T}, v{Sn+r}, v{Sn+r+1}')
        out.append(f'v_max_f32 v{T}, v{T}, v{Sn+31}')
        out.append(f'v_mov_b32 v{T+1}, v{T}')
        out.append('s_nop 1')
        out.append(f'v_permlane32_swap_b32 v{T+1}, v{T}')
        out.append(f'v_max_f32 v{T}, v{T}, v{T+1}')
        out.append(f'v_sub_f32 v{T+1}, v{T}, v{VM}')
        out.append(f'v_cmp_lt_f32 vcc, s29, v{T+1}')
        return out
    def rescale_check():
        nors = a.newlabel('A_nors')
        a('s_nop 0')
        a(f's_cbranch_vccz {nors}')
        a('s_nop 15')
        a('s_nop 15')
        a(f'v_max_f32 v{T}, v{T}, v{VM}')
        a(f'v_sub_f32 v{T+1}, v{VM}, v{T}')
        a(f'v_mul_f32 v{T+1}, s30, v{T+1}')
        a(f'v_exp_f32 v{T+1}, v{T+1}')
        a(f'v_mov_b32 v{VM}, v{T}')
        a(f'v_mul_f32 v{VMC}, s30, v{T}')
        a(f'v_mul_f32 v{VL}, v{VL}, v{T+1}')
        for r in range(64):
            a(f'v_mul_f32 v{O+r}, v{O+r}, v{T+1}')
        a('s_nop 1')
        a.label(nors)

    a('s_mov_b32 s61, 0'); a('s_mov_b32 s62, 0'); a('s_mov_b32 s63, 0'); a('s_mov_b32 s64, 0')
    LOADER = a.newlabel('A_loader')
    a('s_cmp_lg_u32 s66, 0')
    a(f's_cbranch_scc1 {LOADER}')
    a('s_waitcnt vmcnt(0)')
    a('s_barrier')
    a(f'v_add_u32 v{VKR}, s63, v{VKA}')
    for x in kreads(0, 0) + kreads(0, 1): a(x)
    a('s_waitcnt lgkmcnt(0)')
    for x in qk(SA, 0) + qk(SA, 1): a(x)
    a('s_nop 15')
    a('s_nop 7')
    m0l = a.newlabel('A_pm'); m0e = a.newlabel('A_pe')
    a('s_mov_b32 s37, 0')
    a('s_cmp_eq_u32 s34, 0')
    a(f's_cbranch_scc1 {m0l}')
    for x in max_part(SA, False): a(x)
    a(f's_branch {m0e}')
    a.label(m0l)
    for x in max_part(SA, True): a(x)
    a.label(m0e)
    rescale_check()
    for x in rot('s63', 4): a(x)
    a(f'v_add_u32 v{VKR}, s63, v{VKA}')
    for x in kreads(0, 0): a(x)
    a('s_mov_b32 s35, 0')
    if ST:
        sk = a.newlabel('sty')
        a('s_cmp_lg_u32 s60, 0')
        a(f's_cbranch_scc1 {sk}')
        a('s_memtime s[72:73]')
        a.label(sk)
    loop = a.newlabel('A_loop'); fin = a.newlabel('A_fin')
    a.label(loop)
    for p in range(2):
        Sc, Sn = (SA, SB) if p == 0 else (SB, SA)
        if False:
            sk = a.newlabel('stx')
            a('s_cmp_lg_u32 s35, 8')
            a(f's_cbranch_scc1 {sk}')
            a('s_memtime s[70:71]')
            a.label(sk)
        a('s_barrier')
        if False:
            sk = a.newlabel('stx')
            a('s_cmp_lg_u32 s35, 8')
            a(f's_cbranch_scc1 {sk}')
            a('s_memtime s[72:73]')
            a.label(sk)
        a(f's_add_u32 s65, s64, {4*KSL}')
        a(f'v_add_u32 v{VVR}, s65, v{VKA}')
        for x in rot('s64'): a(x)
        a('s_add_u32 s38, s35, 1')
        a('s_cmp_ge_u32 s38, s36')
        last = a.newlabel('A_last'); msk = a.newlabel('A_msk'); nxt = a.newlabel('A_nxt')
        a(f's_cbranch_scc1 {last}')
        a('s_cmp_ge_u32 s38, s34')
        a(f's_cbranch_scc1 {msk}')
        for variant in ('un', 'ma', 'last'):
            if variant == 'ma':
                a.label(msk)
                a('s_sub_u32 s37, s38, s34')
                a('s_lshl_b32 s37, s37, 6')
            if variant == 'last':
                a.label(last)
            ep0 = exp_part(Sc, 0); ep1 = exp_part(Sc, 1)
            if variant != 'last':
                for x in kreads(1-p, 1): a(x)
                a('s_waitcnt lgkmcnt(8)')
                half = len(ep0)//2
                interleave(a, qk(Sn, 0), ep0[:half])
                a('s_waitcnt lgkmcnt(0)')
                interleave(a, qk(Sn, 1), vreads(p, 0) + ep0[half:])
                if False:
                    sk = a.newlabel('stx')
                    a('s_cmp_lg_u32 s35, 8')
                    a(f's_cbranch_scc1 {sk}')
                    a('s_memtime s[74:75]')
                    a.label(sk)
                a('s_waitcnt lgkmcnt(0)')
                a('s_nop 1')
                interleave(a, pv(0), vreads(p, 1) + rot('s63', 4) + [f'v_add_u32 v{VKR}, s63, v{VKA}'] + ep1)
                a('s_waitcnt lgkmcnt(0)')
                a('s_nop 1')
                interleave(a, pv(1), kreads(0, 0) + sum_part(Sc) + max_part(Sn, variant == 'ma'))
                rescale_check()
                if False:
                    sk = a.newlabel('stx')
                    a('s_cmp_lg_u32 s35, 8')
                    a(f's_cbranch_scc1 {sk}')
                    a('s_memtime s[76:77]')
                    a.label(sk)
                a(f's_branch {nxt}')
            else:
                for x in vreads(p, 0) + vreads(p, 1): a(x)
                for x in ep0 + ep1: a(x)
                a('s_waitcnt lgkmcnt(0)')
                a('s_nop 1')
                interleave(a, pv(0) + pv(1), sum_part(Sc))
                a(f's_branch {fin}')
        a.label(nxt)
        a('s_add_u32 s35, s35, 1')
    a(f's_branch {loop}')
    a.label(fin)
    if ST:
        sk = a.newlabel('sty')
        a('s_cmp_lg_u32 s60, 0')
        a(f's_cbranch_scc1 {sk}')
        a('s_memtime s[74:75]')
        a.label(sk)
    a('s_nop 15')
    a('s_nop 7')
    a(f'v_mov_b32 v{T}, v{VL}')
    a('s_nop 1')
    a(f'v_permlane32_swap_b32 v{T}, v{VL}')
    a(f'v_add_f32 v{T}, v{T}, v{VL}')
    a(f'v_rcp_f32 v{T}, v{T}')
    a(f'v_add_u32 v{T+1}, s39, v{VKA}')
    for r in range(64):
        a(f'v_mul_f32 v{O+r}, v{O+r}, v{T}')
    for dt in range(4):
        for grp in range(2):
            d = F0 + (dt*2+grp)*4
            for pp in range(4):
                a(f'v_cvt_pk_bf16_f32 v{d+pp}, v{O+dt*16+grp*8+2*pp}, v{O+dt*16+grp*8+2*pp+1}')
            a(f's_mov_b32 s28, {(dt*2+grp)*65536}')
            a(f'buffer_store_dwordx4 v[{d}:{d+3}], v{T+1}, s[16:19], s28 offen')
    if ST:
        sk = a.newlabel('sto')
        a('s_waitcnt vmcnt(0)')
        a('s_memtime s[76:77]')
        a('s_cmp_lg_u32 s60, 1')
        a(f's_cbranch_scc1 {sk}')
        a('s_cmp_gt_u32 s2, 15')
        a(f's_cbranch_scc1 {sk}')
        a('s_cmp_lg_u32 s25, 0')
        a(f's_cbranch_scc1 {sk}')
        a('s_load_dwordx2 s[80:81], s[0:1], 96')
        a('s_waitcnt lgkmcnt(0)')
        srd(a, 84, 80, 256)
        a('s_sub_u32 s72, s72, s70'); a('s_sub_u32 s74, s74, s70'); a('s_sub_u32 s76, s76, s70')
        a('v_mov_b32 v0, s72'); a('v_mov_b32 v1, s74'); a('v_mov_b32 v2, s76'); a('v_mov_b32 v3, s70')
        a('s_lshl_b32 s78, s2, 4')
        a('v_mov_b32 v4, s78')
        a('buffer_store_dwordx4 v[0:3], v4, s[84:87], 0 offen')
        a.label(sk)
    ENDP = a.newlabel('A_endp')
    a.label(ENDP)
    a('s_cmp_lg_u32 s60, 0')
    a(f's_cbranch_scc1 {done}')
    a('s_mov_b32 s60, 1')
    a('s_waitcnt vmcnt(0)')
    a('s_barrier')
    a(f's_branch {PASS}')
    a.label(LOADER)
    a('s_waitcnt vmcnt(0)')
    for x in loadK(): a(x)
    for x in loadV(): a(x)
    for x in loadK(): a(x)
    for x in loadV(): a(x)
    for x in loadK(): a(x)
    for x in loadK(): a(x)
    a('s_waitcnt vmcnt(12)')
    a('s_barrier')
    a('s_mov_b32 s35, 0')
    LL = a.newlabel('A_ll')
    a.label(LL)
    a('s_waitcnt vmcnt(4)')
    a('s_barrier')
    for x in loadV(): a(x)
    for x in loadK(): a(x)
    a('s_add_u32 s35, s35, 1')
    a('s_cmp_lt_u32 s35, s36')
    a(f's_cbranch_scc1 {LL}')
    a(f's_branch {ENDP}')
    a.label(done)
    a('s_endpgm')
gen_attn.launch = ('attn_kernel', 256, 512, 7*16384, 256, gen_attn)
```

```python
from asmlib import *
from layout import *
import struct

def f2u(x):
    return struct.unpack('<I', struct.pack('<f', x))[0]
def log2(x):
    return x.bit_length()-1

class G:
    def __init__(s, WR, WT, nti, ntj, NS):
        s.WR, s.WT, s.nti, s.ntj, s.NS = WR, WT, nti, ntj, NS
        s.nw = WR*WT
        s.TR = WR*nti*32; s.TC = WT*ntj*32
        s.RB = s.TR*64; s.TB = 32*s.TC*2
        s.STAGE = s.RB + s.TB
        s.nR = s.TR//16//s.nw
        s.nT = s.TC//16//s.nw
        s.rpi = 1024//(s.TC*2)
        s.lpr = 64//s.rpi
        s.ACC = 0
        s.FR = nti*ntj*16
        s.FSZ = (nti+ntj)*4
        s.VRA = s.FR + 2*s.FSZ
        s.VTA = s.VRA + NS
        s.VGR = s.VTA + NS*ntj
        s.VGT = s.VGR + s.nR
        s.L = s.VGT + s.nT
        s.PK = (s.L + 12 + 3)//4*4
        s.TID = s.PK + 16
        s.NV = s.PK + 17

def setup_lds_addrs(a, g, kperm, swap=False):
    RW, TW = ('s28', 's27') if swap else ('s27', 's28')
    L = g.L
    if not swap:
        a(f'v_mov_b32 v{g.TID}, v0')
    a(f'v_and_b32 v{L}, 63, v{g.TID}')
    a(f'v_lshrrev_b32 v{L+1}, 6, v{g.TID}')
    a('s_nop 0')
    a(f'v_readfirstlane_b32 s24, v{L+1}')
    a(f's_lshr_b32 s27, s24, {log2(g.WT)}')
    a(f's_and_b32 s28, s24, {g.WT-1}')
    a(f'v_and_b32 v{L+2}, 31, v{L}')
    a(f's_mul_i32 s25, {RW}, {g.nti*32}')
    a(f'v_add_u32 v{L+2}, s25, v{L+2}')
    a(f'v_lshlrev_b32 v{L+2}, 5, v{L+2}')
    a(f'v_lshrrev_b32 v{L+3}, 5, v{L}')
    a(f'v_bfe_u32 v{L+4}, v{L}, 3, 1')
    a(f'v_xor_b32 v{L+4}, v{L+3}, v{L+4}')
    a(f'v_lshl_add_u32 v{g.VRA}, v{L+4}, 4, v{L+2}')
    for st in range(1, g.NS):
        a(f'v_add_u32 v{g.VRA+st}, {st*g.STAGE}, v{g.VRA}')
    rowb = g.TC*2
    a(f'v_bfe_u32 v{L+5}, v{L}, 2, 2')
    a(f'v_lshl_add_u32 v{L+6}, v{L+3}, {2 if kperm else 3}, v{L+5}')
    a(f'v_mul_u32_u24 v{L+6}, {rowb}, v{L+6}')
    a(f'v_bfe_u32 v{L+7}, v{L}, 4, 1')
    a(f'v_lshlrev_b32 v{L+7}, 1, v{L+7}')
    a(f'v_bfe_u32 v{L+8}, v{L}, 1, 1')
    a(f'v_add_u32 v{L+7}, v{L+7}, v{L+8}')
    a(f's_mul_i32 s25, {TW}, {g.ntj*4}')
    a(f'v_add_u32 v{L+7}, s25, v{L+7}')
    if g.TC >= 128:
        a(f'v_lshlrev_b32 v{L+8}, 2, v{L+5}')
    else:
        a(f'v_bfe_u32 v{L+8}, v{L}, 3, 1')
        a(f'v_lshlrev_b32 v{L+8}, 2, v{L+8}')
    a(f'v_and_b32 v{L+9}, 1, v{L}')
    a(f'v_lshlrev_b32 v{L+9}, 3, v{L+9}')
    a(f'v_add_u32 v{L+6}, v{L+6}, v{L+9}')
    a(f'v_add_u32 v{L+6}, {g.RB}, v{L+6}')
    for tj in range(g.ntj):
        a(f'v_add_u32 v{L+9}, {4*tj}, v{L+7}')
        a(f'v_xor_b32 v{L+9}, v{L+9}, v{L+8}')
        a(f'v_lshl_add_u32 v{g.VTA+tj}, v{L+9}, 4, v{L+6}')
        for st in range(1, g.NS):
            a(f'v_add_u32 v{g.VTA+st*g.ntj+tj}, {st*g.STAGE}, v{g.VTA+tj}')
    a(f's_mul_i32 s30, s24, {g.nR*1024}')
    a(f's_mul_i32 s31, s24, {g.nT*1024}')
    a(f's_add_u32 s31, s31, {g.RB}')

def setup_dma(a, g, NR, sT, rbase, cbase):
    L = g.L
    nrb = g.TR//32
    a(f'v_lshlrev_b32 v{L+4}, 4, v{L}')
    for j in range(g.nR):
        a(f's_mul_i32 s25, s24, {g.nR}')
        a(f's_add_u32 s25, s25, {j}')
        a(f's_lshr_b32 s26, s25, {log2(nrb)}')
        a(f's_and_b32 s25, s25, {nrb-1}')
        a(f's_mul_i32 s26, s26, {NR}')
        a(f's_lshl_b32 s25, s25, 5')
        a(f's_add_u32 s25, s25, s26')
        a(f's_add_u32 s25, s25, {rbase}')
        a(f's_lshl_b32 s25, s25, 5')
        a(f'v_add_u32 v{g.VGR+j}, s25, v{L+4}')
    a(f's_mov_b32 s26, {sT}')
    a(f's_lshl_b32 s29, {cbase}, 1')
    for j in range(g.nT):
        a(f's_mul_i32 s25, s24, {g.nT*g.rpi}')
        a(f's_add_u32 s25, s25, {j*g.rpi}')
        a(f'v_lshrrev_b32 v{L+4}, {log2(g.lpr)}, v{L}')
        a(f'v_add_u32 v{L+4}, s25, v{L+4}')
        if g.TC >= 128:
            a(f'v_and_b32 v{L+5}, 3, v{L+4}')
        else:
            a(f'v_bfe_u32 v{L+5}, v{L+4}, 1, 1')
        a(f'v_lshlrev_b32 v{L+5}, 2, v{L+5}')
        a(f'v_and_b32 v{L+6}, {g.lpr-1}, v{L}')
        a(f'v_xor_b32 v{L+5}, v{L+5}, v{L+6}')
        a(f'v_mul_lo_u32 v{L+4}, v{L+4}, s26')
        a(f'v_lshl_add_u32 v{L+4}, v{L+5}, 4, v{L+4}')
        a(f'v_add_u32 v{g.VGT+j}, s29, v{L+4}')

def zero_acc(a, g):
    for r in range(g.nti*g.ntj*16):
        a(f'v_mov_b32 v{g.ACC+r}, 0')

def main_loop(a, g, ks, sT, mode, kperm, NR, k0R=0, k0T=0, stamp=False):
    nd = g.nR + g.nT
    a(f's_mov_b32 s32, {k0R}')
    a(f's_mov_b32 s33, {k0T}')
    rowb = g.TC*2
    def dma_list(st):
        out = []
        for j in range(g.nR):
            out.append([f's_add_u32 m0, s30, {st*g.STAGE + j*1024}', 's_nop 0',
                        f'buffer_load_dwordx4 v{g.VGR+j}, s[4:7], s32 offen lds'])
        for j in range(g.nT):
            out.append([f's_add_u32 m0, s31, {st*g.STAGE + j*1024}', 's_nop 0',
                        f'buffer_load_dwordx4 v{g.VGT+j}, s[8:11], s33 offen lds'])
        out[-1] = out[-1] + [f's_add_u32 s32, s32, {NR*64}', f's_add_u32 s33, s33, {32*sT}']
        return out
    def read_list(st, kk):
        out = []
        fb = g.FR + kk*g.FSZ
        for i in range(g.ntj):
            for h in range(2):
                off = kk*16*rowb + (h*8*rowb if kperm else h*4*rowb)
                r0 = fb + g.nti*4 + i*4 + h*2
                out.append([f'ds_read_b64_tr_b16 v[{r0}:{r0+1}], v{g.VTA+st*g.ntj+i} offset:{off}'])
        for i in range(g.nti):
            out.append([f'ds_read_b128 v[{fb+i*4}:{fb+i*4+3}], v{g.VRA+st} offset:{kk*g.TR*32+i*1024}'])
        return out
    def mfma_list(kk):
        out = []
        fb = g.FR + kk*g.FSZ
        for ti in range(g.nti):
            for tj in range(g.ntj):
                rf = f'v[{fb+ti*4}:{fb+ti*4+3}]'
                tf = f'v[{fb+g.nti*4+tj*4}:{fb+g.nti*4+tj*4+3}]'
                if mode == 'RT':
                    acc = g.ACC + (ti*g.ntj+tj)*16; A, B = tf, rf
                elif mode == 'TR':
                    acc = g.ACC + (ti*g.ntj+tj)*16; A, B = rf, tf
                elif mode == 'TRx':
                    acc = g.ACC + (tj*g.ntj+ti)*16; A, B = rf, tf
                out.append(f'v_mfma_f32_32x32x16_bf16 v[{acc}:{acc+15}], {A}, {B}, v[{acc}:{acc+15}]')
        return out
    def interleave(mf, fillers):
        n = len(mf); m = len(fillers); idx = 0
        for i, x in enumerate(mf):
            a(x)
            tgt = min(m, ((i+1)*m*2 + n - 1)//n)
            while idx < tgt:
                for y in fillers[idx]: a(y)
                idx += 1
        while idx < m:
            for y in fillers[idx]: a(y)
            idx += 1
    for st in range(g.NS):
        for grp in dma_list(st):
            for y in grp: a(y)
    a(f's_waitcnt vmcnt({nd*(g.NS-1)})')
    a('s_barrier')
    if stamp: a('s_memtime s[62:63]')
    for grp in read_list(0, 0):
        for y in grp: a(y)
    a('s_mov_b32 s34, 0')
    loop = a.newlabel('G_loop'); end = a.newlabel('G_end')
    a.label(loop)
    for st in range(g.NS):
        tail = a.newlabel('G_tail'); cont = a.newlabel('G_cont')
        a('s_waitcnt lgkmcnt(0)')
        interleave(mfma_list(0), read_list(st, 1))
        a(f's_add_u32 s35, s34, {g.NS}')
        a(f's_cmp_ge_u32 s35, {ks}')
        a(f's_cbranch_scc1 {tail}')
        a(f's_waitcnt vmcnt({nd*(g.NS-2)}) lgkmcnt(0)')
        a('s_barrier')
        rl = read_list((st+1) % g.NS, 0); dl = dma_list(st)
        fl = []
        for i in range(max(len(rl), len(dl))):
            if i < len(rl): fl.append(rl[i])
            if i < len(dl): fl.append(dl[i])
        interleave(mfma_list(1), fl)
        a(f's_branch {cont}')
        a.label(tail)
        a('s_waitcnt vmcnt(0) lgkmcnt(0)')
        a('s_barrier')
        interleave(mfma_list(1), read_list((st+1) % g.NS, 0))
        a.label(cont)
        a('s_add_u32 s34, s34, 1')
        a(f's_cmp_ge_u32 s34, {ks}')
        a(f's_cbranch_scc1 {end}')
    a(f's_branch {loop}')
    a.label(end)
    a('s_waitcnt lgkmcnt(0)')

def pack8(a, dst, src):
    for p in range(4):
        a(f'v_cvt_pk_bf16_f32 v{dst+p}, v{src+2*p}, v{src+2*p+1}')

def gelu_regs(a, g, acc, tj):
    L = g.L; BF = g.FR
    for r in range(16):
        x = f'v{acc+r}'; t = f'v{L+4+(r&3)}'
        a(f'v_cvt_pk_bf16_f32 {x}, {x}, {x}')
        a(f'v_lshlrev_b32 {x}, 16, {x}')
        a(f'v_add_f32 {x}, {x}, v{BF+tj*16+r}')
        a(f'v_cvt_pk_bf16_f32 {x}, {x}, {x}')
        a(f'v_lshlrev_b32 {x}, 16, {x}')
        a(f'v_mul_f32 {t}, {x}, {x}')
        a(f'v_mul_f32 {t}, s36, {t}')
        a(f'v_add_f32 {t}, s37, {t}')
        a(f'v_mul_f32 {t}, {t}, {x}')
        a(f'v_mul_f32 {t}, s38, {t}')
        a(f'v_exp_f32 {t}, {t}')
        a('s_nop 0')
        a(f'v_add_f32 {t}, 1.0, {t}')
        a(f'v_rcp_f32 {t}, {t}')
        a('s_nop 0')
        a(f'v_mul_f32 {x}, {x}, {t}')

def epilogue(a, g, mode, NR, gelu=False):
    L = g.L
    if mode == 'RT':
        rw, rn, rb = 's27', g.nti, 's22'; cw, cn, cb = 's28', g.ntj, 's23'
    else:
        rw, rn, rb = 's28', g.ntj, 's23'; cw, cn, cb = 's27', g.nti, 's22'
    a(f'v_and_b32 v{L+2}, 31, v{L}')
    a(f's_mul_i32 s25, {rw}, {rn*32}')
    a(f's_add_u32 s25, s25, {rb}')
    a(f'v_add_u32 v{L+2}, s25, v{L+2}')
    a(f'v_lshlrev_b32 v{L+2}, 5, v{L+2}')
    a(f'v_lshrrev_b32 v{L+3}, 5, v{L}')
    a(f'v_bfe_u32 v{L+8}, v{L}, 3, 1')
    a(f'v_xor_b32 v{L+8}, v{L+3}, v{L+8}')
    a(f'v_lshl_add_u32 v{L+2}, v{L+8}, 4, v{L+2}')
    a(f's_mul_i32 s25, {cw}, {cn*32}')
    a(f's_add_u32 s25, s25, {cb}')
    a(f's_lshr_b32 s26, s25, 4')
    a(f's_mul_i32 s26, s26, {NR*32}')
    a(f'v_add_u32 v{L+2}, s26, v{L+2}')
    if gelu:
        a(f's_lshl_b32 s25, s25, 1')
        a(f'v_lshlrev_b32 v{L+8}, 3, v{L+3}')
        a(f'v_add_u32 v{L+8}, s25, v{L+8}')
        B = g.PK
        for tj in range(g.ntj):
            for q in range(4):
                a(f'buffer_load_dwordx2 v[{B+(tj*4+q)*2}:{B+(tj*4+q)*2+1}], v{L+8}, s[16:19], 0 offen offset:{tj*64+q*16}')
        a('s_waitcnt vmcnt(0)')
        BF = g.FR
        for gi in range(4*g.ntj):
            a(f'v_lshlrev_b32 v{BF+4*gi}, 16, v{B+2*gi}')
            a(f'v_and_b32 v{BF+4*gi+1}, 0xffff0000, v{B+2*gi}')
            a(f'v_lshlrev_b32 v{BF+4*gi+2}, 16, v{B+2*gi+1}')
            a(f'v_and_b32 v{BF+4*gi+3}, 0xffff0000, v{B+2*gi+1}')
        a(f's_mov_b32 s36, 0x{f2u(0.7978845608028654*0.044715):x}')
        a(f's_mov_b32 s37, 0x{f2u(0.7978845608028654):x}')
        a(f's_mov_b32 s38, 0x{f2u(-2.0*1.4426950408889634):x}')
    cnt = 0
    for ti in range(g.nti):
        for tj in range(g.ntj):
            acc = g.ACC + (ti*g.ntj+tj)*16
            if gelu:
                gelu_regs(a, g, acc, tj)
            rt, ct = (ti, tj) if mode == 'RT' else (tj, ti)
            for grp in range(2):
                dreg = g.PK + (cnt % 4)*4; cnt += 1
                pack8(a, dreg, acc + grp*8)
                a(f's_mov_b32 s39, {(ct*2+grp)*NR*32}')
                a(f'buffer_store_dwordx4 v[{dreg}:{dreg+3}], v{L+2}, s[12:15], s39 offen offset:{rt*1024}')

GA = G(2, 4, 4, 2, 4)
GU = G(2, 4, 2, 2, 4)
NU = 40

def gen_gemm1(a, name):
    a.raw('.p2align 8')
    a.label(name)
    done = a.newlabel('G1_done')
    LQ = a.newlabel('G1_Q'); LK = a.newlabel('G1_K'); LV = a.newlabel('G1_V')
    a('s_load_dwordx4 s[40:43], s[0:1], 8')
    a('s_load_dwordx4 s[44:47], s[0:1], 24')
    a('s_load_dwordx4 s[48:51], s[0:1], 56')
    a('s_load_dwordx2 s[52:53], s[0:1], 104')
    a(f's_cmp_ge_u32 s2, {NU+384}')
    a(f's_cbranch_scc1 {done}')
    a('s_waitcnt lgkmcnt(0)')
    a(f's_cmp_ge_u32 s2, {NU}')
    a(f's_cbranch_scc1 {LQ}')
    a('s_cmp_ge_u32 s2, 35')
    a(f's_cbranch_scc1 {done}')
    a('s_mul_hi_u32 s20, s2, 0x33333334')
    a('s_mul_i32 s21, s20, 5')
    a('s_sub_u32 s21, s2, s21')
    a('s_lshl_b32 s22, s21, 7')
    a('s_lshl_b32 s23, s20, 8')
    srd(a, 4, 52, HT_SZ, HT_OFF)
    srd(a, 8, 48, 2048*1728*2)
    srd(a, 12, 52, U_SZ, U_OFF)
    srd(a, 16, 50, 1728*2)
    g = GU
    setup_lds_addrs(a, g, False)
    setup_dma(a, g, 640, 3456, 's22', 's23')
    zero_acc(a, g)
    main_loop(a, g, 64, 3456, 'RT', False, 640)
    a('s_nop 15')
    a('s_lshl_b32 s25, s28, 6')
    a('s_add_u32 s25, s25, s23')
    a('s_cmp_ge_u32 s25, 1728')
    a(f's_cbranch_scc1 {done}')
    epilogue(a, g, 'RT', 640, gelu=True)
    a('s_endpgm')
    g = GA
    def decode(base):
        a(f's_sub_u32 s20, s2, {base}')
        a('s_and_b32 s21, s20, 7')
        a('s_lshr_b32 s20, s20, 3')
        a('s_and_b32 s22, s21, 3')
        a('s_lshl_b32 s22, s22, 1')
        a('s_and_b32 s25, s20, 1')
        a('s_add_u32 s22, s22, s25')
        a('s_lshl_b32 s22, s22, 8')
        a('s_lshr_b32 s23, s21, 2')
        a('s_lshl_b32 s23, s23, 3')
        a('s_lshr_b32 s25, s20, 1')
        a('s_add_u32 s23, s23, s25')
        a('s_lshl_b32 s23, s23, 8')
    import os
    ST = os.environ.get('STAMP')
    def body(ks, mode):
        if ST: a('s_memtime s[60:61]')
        setup_lds_addrs(a, g, False)
        setup_dma(a, g, 2048, 8192, 's22', 's23')
        zero_acc(a, g)
        main_loop(a, g, ks, 8192, mode, False, 2048, stamp=bool(ST))
        if ST: a('s_memtime s[64:65]')
        a('s_nop 15')
    def stamp_out():
        if not ST: return
        a('s_waitcnt vmcnt(0)')
        a('s_memtime s[66:67]')
        a('s_load_dwordx2 s[70:71], s[0:1], 96')
        a('s_waitcnt lgkmcnt(0)')
        srd(a, 72, 70, 256)
        a('s_sub_u32 s62, s62, s60')
        a('s_sub_u32 s64, s64, s60')
        a('s_sub_u32 s66, s66, s60')
        a('v_mov_b32 v0, s62')
        a('v_mov_b32 v1, s64')
        a('v_mov_b32 v2, s66')
        a('v_mov_b32 v3, s60')
        a('s_and_b32 s76, s2, 15')
        a('s_lshl_b32 s76, s76, 4')
        a('v_mov_b32 v4, s76')
        a('s_cmp_lg_u32 s24, 0')
        sk = a.newlabel('stk')
        a(f's_cbranch_scc1 {sk}')
        a('v_cmp_eq_u32 vcc, 0, v%d' % g.L)
        a('s_and_saveexec_b64 s[78:79], vcc')
        a('buffer_store_dwordx4 v[0:3], v4, s[72:75], 0 offen')
        a.label(sk)
    a.label(LQ)
    a(f's_cmp_ge_u32 s2, {NU+128}')
    a(f's_cbranch_scc1 {LK}')
    decode(NU)
    srd(a, 4, 52, XN_SZ, XN_OFF)
    srd(a, 8, 42, 640*8192)
    srd(a, 12, 52, BIG_SZ, Q_OFF)
    body(20, 'RT')
    epilogue(a, g, 'RT', 2048)
    a('s_endpgm')
    a.label(LK)
    a(f's_cmp_ge_u32 s2, {NU+256}')
    a(f's_cbranch_scc1 {LV}')
    decode(NU+128)
    srd(a, 4, 52, CKV_SZ, CKV_OFF)
    srd(a, 8, 44, 512*8192)
    srd(a, 12, 52, BIG_SZ, K_OFF)
    body(16, 'RT')
    epilogue(a, g, 'RT', 2048)
    stamp_out()
    a('s_endpgm')
    a.label(LV)
    decode(NU+256)
    srd(a, 4, 52, CKV_SZ, CKV_OFF)
    srd(a, 8, 46, 512*8192)
    srd(a, 12, 52, BIG_SZ, VT_OFF)
    body(16, 'TR')
    epilogue(a, g, 'TR', 4096)
    a.label(done)
    a('s_endpgm')
gen_gemm1.launch = ('gemm1_kernel', NU+384, 512, GA.STAGE*GA.NS, max(GA.NV, GU.NV), gen_gemm1)

GF = G(2, 2, 2, 2, 4)
PART_OFF = 0x6000000
PART_SZ = 3*2048*640*4

def gen_final(a, name):
    g = GF
    a.raw('.p2align 8')
    a.label(name)
    done = a.newlabel('F_done'); EP = a.newlabel('F_ep')
    a('s_load_dwordx2 s[42:43], s[0:1], 40')
    a('s_load_dwordx2 s[44:45], s[0:1], 72')
    a('s_load_dwordx2 s[52:53], s[0:1], 104')
    a('s_cmp_ge_u32 s2, 240')
    a(f's_cbranch_scc1 {done}')
    a('s_and_b32 s20, s2, 7')
    a('s_lshr_b32 s21, s2, 3')
    a('s_mul_hi_u32 s36, s21, 0x55555556')
    a('s_mul_i32 s37, s36, 3')
    a('s_sub_u32 s37, s21, s37')
    a('s_and_b32 s22, s36, 1')
    a('s_lshl_b32 s20, s20, 1')
    a('s_add_u32 s22, s22, s20')
    a('s_lshl_b32 s22, s22, 7')
    a('s_lshr_b32 s23, s36, 1')
    a('s_lshl_b32 s23, s23, 7')
    a('s_waitcnt lgkmcnt(0)')
    setup_lds_addrs(a, g, True)
    zero_acc(a, g)
    srd(a, 4, 52, BIG_SZ, CTX_OFF)
    srd(a, 8, 42, 4096*1280)
    setup_dma(a, g, 2048, 1280, 's22', 's23')
    a('s_mul_i32 s38, s37, 60')
    a(f's_mul_i32 s39, s38, {2048*64}')
    a(f's_mul_i32 s38, s38, {32*1280}')
    a('s_cmp_eq_u32 s37, 2')
    a('s_cselect_b32 s54, 8, 60')
    main_loop(a, g, 's54', 1280, 'RT', True, 2048, k0R='s39', k0T='s38')
    a('s_cmp_lg_u32 s37, 2')
    a(f's_cbranch_scc1 {EP}')
    a('s_barrier')
    srd(a, 4, 52, U_SZ, U_OFF)
    srd(a, 8, 44, 1728*4096)
    setup_lds_addrs(a, g, True, swap=True)
    setup_dma(a, g, 640, 4096, 's23', 's22')
    main_loop(a, g, 54, 4096, 'TRx', True, 640)
    a.label(EP)
    a('s_nop 15')
    L = g.L
    srd(a, 12, 52, PART_SZ, PART_OFF)
    a(f'v_and_b32 v{L+2}, 31, v{L}')
    a('s_lshl_b32 s25, s27, 6')
    a('s_add_u32 s25, s25, s22')
    a(f'v_add_u32 v{L+2}, s25, v{L+2}')
    a(f'v_lshlrev_b32 v{L+2}, 5, v{L+2}')
    a(f'v_lshrrev_b32 v{L+3}, 5, v{L}')
    a(f'v_lshl_add_u32 v{L+2}, v{L+3}, 4, v{L+2}')
    a('s_lshl_b32 s25, s28, 6')
    a('s_add_u32 s25, s25, s23')
    a('s_lshr_b32 s25, s25, 3')
    a('s_lshl_b32 s25, s25, 16')
    a(f's_mul_i32 s26, s37, {2048*640*4}')
    a('s_add_u32 s25, s25, s26')
    a(f'v_add_u32 v{L+2}, s25, v{L+2}')
    for ti in range(2):
        for tj in range(2):
            acc = g.ACC + (ti*2+tj)*16
            for q in range(4):
                a(f's_mov_b32 s39, {(tj*4+q)*65536}')
                a(f'buffer_store_dwordx4 v[{acc+4*q}:{acc+4*q+3}], v{L+2}, s[12:15], s39 offen offset:{ti*1024}')
    a.label(done)
    a('s_endpgm')
gen_final.launch = ('final_kernel', 240, 256, GF.STAGE*GF.NS, GF.NV, gen_final)

def gen_comb(a, name):
    a.raw('.p2align 8')
    a.label(name)
    done = a.newlabel('C_done')
    a('s_load_dwordx2 s[40:41], s[0:1], 0')
    a('s_load_dwordx4 s[44:47], s[0:1], 80')
    a('s_load_dwordx2 s[52:53], s[0:1], 104')
    a('s_cmp_ge_u32 s2, 640')
    a(f's_cbranch_scc1 {done}')
    a('s_mul_hi_u32 s3, s2, 0x1999999a')
    a('s_mul_i32 s4, s3, 10')
    a('s_sub_u32 s4, s2, s4')
    a('v_lshrrev_b32 v1, 3, v0')
    a('s_lshl_b32 s3, s3, 5')
    a('v_add_u32 v1, s3, v1')
    a('v_and_b32 v2, 7, v0')
    a('s_lshl_b32 s4, s4, 3')
    a('v_add_u32 v2, s4, v2')
    a('v_lshlrev_b32 v3, 16, v2')
    a('v_lshl_add_u32 v3, v1, 5, v3')
    a('v_mul_u32_u24 v4, 1280, v1')
    a('v_lshl_add_u32 v4, v2, 4, v4')
    a('v_lshlrev_b32 v5, 1, v1')
    a('s_waitcnt lgkmcnt(0)')
    srd(a, 8, 52, PART_SZ, PART_OFF)
    srd(a, 12, 40, 2048*1280)
    srd(a, 16, 44, 4096)
    srd(a, 20, 46, 2048*1280)
    a('s_mov_b32 s5, %d' % (2048*640*4))
    a('s_mov_b32 s6, %d' % (2*2048*640*4))
    a('buffer_load_dwordx4 v[8:11], v3, s[8:11], 0 offen')
    a('buffer_load_dwordx4 v[12:15], v3, s[8:11], 0 offen offset:16')
    a('buffer_load_dwordx4 v[16:19], v3, s[8:11], s5 offen')
    a('buffer_load_dwordx4 v[20:23], v3, s[8:11], s5 offen offset:16')
    a('buffer_load_dwordx4 v[24:27], v3, s[8:11], s6 offen')
    a('buffer_load_dwordx4 v[28:31], v3, s[8:11], s6 offen offset:16')
    a('buffer_load_dwordx4 v[32:35], v4, s[12:15], 0 offen')
    a('buffer_load_ushort v36, v5, s[16:19], 0 offen')
    a('s_waitcnt vmcnt(0)')
    a('v_lshlrev_b32 v36, 16, v36')
    for e in range(4):
        a(f'v_lshlrev_b32 v{40+2*e}, 16, v{32+e}')
        a(f'v_and_b32 v{41+2*e}, 0xffff0000, v{32+e}')
    for e in range(8):
        a(f'v_add_f32 v{8+e}, v{8+e}, v{16+e}')
        a(f'v_add_f32 v{8+e}, v{8+e}, v{24+e}')
        a(f'v_add_f32 v{8+e}, v{8+e}, v36')
        a(f'v_add_f32 v{8+e}, v{8+e}, v{40+e}')
    for e in range(4):
        a(f'v_cvt_pk_bf16_f32 v{48+e}, v{8+2*e}, v{9+2*e}')
    a('buffer_store_dwordx4 v[48:51], v4, s[20:23], 0 offen')
    a.label(done)
    a('s_endpgm')
gen_comb.launch = ('comb_kernel', 640, 256, 0, 56, gen_comb)
```

```python
from asmlib import *
from layout import *
import struct
def f2u(x):
    return struct.unpack('<I', struct.pack('<f', x))[0]

def rnd(a, dst, src):
    a(f'v_cvt_pk_bf16_f32 {dst}, {src}, {src}')
    a(f'v_lshlrev_b32 {dst}, 16, {dst}')

def reduce1(a, r, tmp):
    for off in (0x041F, 0x081F, 0x101F, 0x201F, 0x401F):
        a(f'ds_swizzle_b32 v{tmp}, v{r} offset:0x{off:x}')
        a('s_waitcnt lgkmcnt(0)')
        a(f'v_add_f32 v{r}, v{r}, v{tmp}')
    a(f'v_mov_b32 v{tmp}, v{r}')
    a('s_nop 1')
    a(f'v_permlane32_swap_b32 v{tmp}, v{r}')
    a(f'v_add_f32 v{r}, v{r}, v{tmp}')

def layernorm1(a, X, S, M, T):
    invh = f2u(1.0/640.0); epsh = f2u(1e-5)
    a(f'v_add_f32 v{S}, v{X}, v{X+1}')
    for j in range(2, 10):
        a(f'v_add_f32 v{S}, v{S}, v{X+j}')
    reduce1(a, S, T)
    a(f'v_mul_f32 v{M}, 0x{invh:x}, v{S}')
    a(f'v_sub_f32 v{T}, v{X}, v{M}')
    a(f'v_mul_f32 v{S}, v{T}, v{T}')
    for j in range(1, 10):
        a(f'v_sub_f32 v{T}, v{X+j}, v{M}')
        a(f'v_fmac_f32 v{S}, v{T}, v{T}')
    reduce1(a, S, T)
    a(f'v_mul_f32 v{S}, 0x{invh:x}, v{S}')
    rnd(a, f'v{S}', f'v{S}')
    a(f'v_add_f32 v{S}, 0x{epsh:x}, v{S}')
    rnd(a, f'v{S}', f'v{S}')
    a(f'v_sqrt_f32 v{S}, v{S}')
    a('s_nop 0')
    rnd(a, f'v{S}', f'v{S}')
    a(f'v_rcp_f32 v{S}, v{S}')
    rnd(a, f'v{M}', f'v{M}')
    for j in range(10):
        r = f'v{X+j}'
        a(f'v_sub_f32 {r}, {r}, v{M}')
        rnd(a, r, r)
        a(f'v_mul_f32 {r}, {r}, v{S}')
        rnd(a, r, r)

def gen_ln(a, name):
    a.raw('.p2align 8')
    a.label(name)
    done = a.newlabel('LN_done'); CK = a.newlabel('LN_ckv')
    a('s_load_dwordx4 s[16:19], s[0:1], 0')
    a('s_load_dwordx2 s[20:21], s[0:1], 104')
    a('s_cmp_ge_u32 s2, 512')
    a(f's_cbranch_scc1 {done}')
    a('s_cmp_ge_u32 s2, 256')
    a(f's_cbranch_scc1 {CK}')
    a('v_and_b32 v1, 63, v0')
    a('v_lshrrev_b32 v2, 6, v0')
    a('s_lshl_b32 s3, s2, 3')
    a('v_add_u32 v3, s3, v2')
    a('v_mul_u32_u24 v4, 1280, v3')
    a('v_lshl_add_u32 v4, v1, 2, v4')
    a('v_lshrrev_b32 v5, 3, v1')
    a('v_lshlrev_b32 v5, 16, v5')
    a('v_lshl_add_u32 v5, v3, 5, v5')
    a('v_bfe_u32 v6, v1, 2, 1')
    a('v_bfe_u32 v7, v3, 3, 1')
    a('v_xor_b32 v6, v6, v7')
    a('v_lshl_add_u32 v5, v6, 4, v5')
    a('v_and_b32 v6, 3, v1')
    a('v_lshl_add_u32 v5, v6, 2, v5')
    a('s_waitcnt lgkmcnt(0)')
    srd(a, 4, 16, XN_SZ)
    srd(a, 8, 20, XN_SZ, XN_OFF)
    srd(a, 12, 20, HT_SZ, HT_OFF)
    D = 10; X = 16; S = 26; M = 27; T = 28
    for j in range(5):
        a(f'buffer_load_dword v{D+j}, v4, s[4:7], 0 offen offset:{j*256}')
    a('s_waitcnt vmcnt(0)')
    for j in range(5):
        a(f'v_lshlrev_b32 v{X+2*j}, 16, v{D+j}')
        a(f'v_and_b32 v{X+2*j+1}, 0xffff0000, v{D+j}')
    layernorm1(a, X, S, M, T)
    for j in range(5):
        a(f'v_cvt_pk_bf16_f32 v{D+j}, v{X+2*j}, v{X+2*j+1}')
    for j in range(5):
        a(f's_mov_b32 s22, {j*8*65536}')
        a(f'buffer_store_dword v{D+j}, v5, s[8:11], s22 offen')
    layernorm1(a, X, S, M, T)
    a('v_lshlrev_b32 v6, 5, v1')
    a('v_lshl_add_u32 v6, v2, 1, v6')
    for j in range(5):
        a(f'ds_write_b16_d16_hi v6, v{X+2*j} offset:{j*2048}')
        a(f'ds_write_b16_d16_hi v6, v{X+2*j+1} offset:{j*2048+16}')
    a('s_waitcnt lgkmcnt(0)')
    a('s_barrier')
    a('v_lshlrev_b32 v6, 4, v0')
    a('ds_read_b128 v[8:11], v6')
    a('ds_read_b128 v[12:15], v6 offset:8192')
    a('s_lshr_b32 s22, s3, 4')
    a('s_mul_i32 s22, s22, 20480')
    a('s_bfe_u32 s23, s3, 0x10003')
    a('v_bfe_u32 v6, v0, 3, 1')
    a('v_xor_b32 v6, s23, v6')
    a('v_lshlrev_b32 v7, 5, v0')
    a('v_lshl_add_u32 v7, v6, 4, v7')
    a('v_add_u32 v7, s22, v7')
    a('v_add_u32 v6, 16384, v7')
    a('s_waitcnt lgkmcnt(0)')
    a('buffer_store_dwordx4 v[8:11], v7, s[12:15], 0 offen')
    a('v_cmp_gt_u32 vcc, 128, v0')
    a('s_and_saveexec_b64 s[24:25], vcc')
    a('buffer_store_dwordx4 v[12:15], v6, s[12:15], 0 offen')
    a('s_mov_b64 exec, s[24:25]')
    a('s_endpgm')
    a.label(CK)
    a('s_sub_u32 s3, s2, 256')
    a('s_lshl_b32 s3, s3, 9')
    a('v_add_u32 v1, s3, v0')
    a('v_lshlrev_b32 v2, 4, v1')
    a('v_lshrrev_b32 v3, 6, v1')
    a('v_bfe_u32 v4, v1, 1, 5')
    a('v_lshlrev_b32 v4, 16, v4')
    a('v_lshl_add_u32 v4, v3, 5, v4')
    a('v_and_b32 v5, 1, v1')
    a('v_bfe_u32 v6, v3, 3, 1')
    a('v_xor_b32 v5, v5, v6')
    a('v_lshl_add_u32 v4, v5, 4, v4')
    a('s_waitcnt lgkmcnt(0)')
    srd(a, 4, 18, CKV_SZ)
    srd(a, 8, 20, CKV_SZ, CKV_OFF)
    a('buffer_load_dwordx4 v[8:11], v2, s[4:7], 0 offen')
    a('s_waitcnt vmcnt(0)')
    a('buffer_store_dwordx4 v[8:11], v4, s[8:11], 0 offen')
    a.label(done)
    a('s_endpgm')
gen_ln.launch = ('ln_kernel', 512, 512, 16384, 32, gen_ln)
```

```python
import sys
from asmlib import *
from k_ln2 import gen_ln
from k_gemm3 import gen_gemm1, gen_final, gen_comb
NAME = 'parallel_sum__compressed_kv_cla__mixer_token_mlp__prompt'

def kd(name, vgpr, sgpr=102):
    acc = min(256, (vgpr + 3)//4*4)
    return f'''.amdhsa_kernel {name}
  .amdhsa_next_free_vgpr {vgpr}
  .amdhsa_next_free_sgpr {sgpr}
  .amdhsa_accum_offset {acc}
  .amdhsa_group_segment_fixed_size 0
  .amdhsa_kernarg_size 112
  .amdhsa_user_sgpr_count 2
  .amdhsa_user_sgpr_kernarg_segment_ptr 1
  .amdhsa_system_sgpr_workgroup_id_x 1
.end_amdhsa_kernel
'''

def main(which):
    hdr = open('cdna_kernels/%s.s.ref' % NAME).read().split('; Override')[0]
    kernels = []
    kernels.append(gen_ln.launch)
    kernels.append(gen_gemm1.launch)
    if 'attn' in which:
        from k_attn4 import gen_attn
        kernels.append(gen_attn.launch)
    if 'final' in which:
        kernels.append(gen_final.launch)
        kernels.append(gen_comb.launch)
    out = hdr
    for k in kernels:
        out += f'; @launch kernel={k[0]} grid=({k[1]},1,1) block=({k[2]},1,1) lds={k[3]}\n'
    out += '.amdgcn_target "amdgcn-amd-amdhsa--gfx950"\n.text\n'
    a = Asm()
    for k in kernels:
        a.raw(f'.globl {k[0]}')
        a.raw(f'.type {k[0]},@function')
        k[5](a, k[0])
    out += a.text()
    out += '.section .rodata,"a"\n'
    for k in kernels:
        out += '.p2align 6\n' + kd(k[0], k[4])
    open('cdna_kernels/%s.s' % NAME, 'w').write(out)

if __name__ == '__main__':
    main(sys.argv[1:])
```

```python
from asmlib import *
from layout import *
import struct, math, os
def f2u(x):
    return struct.unpack('<I', struct.pack('<f', x))[0]

O = 0; SA = 64; SB = 96; Q = 128; P = 160; F0 = 176; F1 = 208
VKA = 240; VKR = 241; VVR = 242; VTID = 243
VGK = 244; VGV = 246
VM = 248; VL = 249; VMC = 250; VQI = 251; T = 252
PS = 32768

def interleave(a, mf, fl):
    idx = 0; n = len(mf); rem = len(fl)
    for i, x in enumerate(mf):
        a(x)
        tgt = ((i+1)*rem + n - 1)//n
        while idx < tgt:
            a(fl[idx]); idx += 1

def gen_attn(a, name):
    a.raw('.p2align 8')
    a.label(name)
    done = a.newlabel('A_done')
    a('s_load_dwordx2 s[40:41], s[0:1], 104')
    a('s_cmp_ge_u32 s2, 256')
    a(f's_cbranch_scc1 {done}')
    a(f'v_mov_b32 v{VTID}, v0')
    a('s_mov_b32 s60, 0')
    a('s_waitcnt lgkmcnt(0)')
    PASS = a.newlabel('A_pass')
    a.label(PASS)
    a('s_and_b32 s21, s2, 7')
    a('s_lshr_b32 s20, s2, 3')
    a('s_and_b32 s22, s20, 3')
    a('s_lshl_b32 s21, s21, 2')
    a('s_add_u32 s22, s22, s21')
    a('s_lshr_b32 s23, s20, 2')
    a('s_sub_u32 s24, 15, s23')
    a('s_cmp_eq_u32 s60, 0')
    a('s_cselect_b32 s23, s24, s23')
    srd(a, 4, 40, BIG_SZ, Q_OFF)
    srd(a, 8, 40, BIG_SZ, K_OFF)
    srd(a, 12, 40, BIG_SZ, VT_OFF)
    srd(a, 16, 40, BIG_SZ, CTX_OFF)
    L = F0
    a(f'v_and_b32 v{L}, 63, v{VTID}')
    a(f'v_lshrrev_b32 v{L+1}, 6, v{VTID}')
    a('s_nop 0')
    a(f'v_readfirstlane_b32 s25, v{L+1}')
    a('s_lshr_b32 s66, s25, 2')
    a('s_and_b32 s25, s25, 3')
    a(f'v_and_b32 v{L+2}, 31, v{L}')
    a(f'v_lshrrev_b32 v{L+4}, 5, v{L}')
    a(f'v_bfe_u32 v{L+5}, v{L}, 3, 1')
    a(f'v_xor_b32 v{L+5}, v{L+5}, v{L+4}')
    a(f'v_lshlrev_b32 v{L+5}, 4, v{L+5}')
    a(f'v_lshl_add_u32 v{VKA}, v{L+2}, 5, v{L+5}')
    a('s_lshl_b32 s26, s23, 7')
    a('s_lshl_b32 s27, s25, 5')
    a('s_add_u32 s26, s26, s27')
    a('s_lshl_b32 s27, s22, 14')
    a('s_add_u32 s27, s27, s26')
    a('s_lshl_b32 s39, s27, 5')
    a(f'v_add_u32 v{L+9}, s39, v{VKA}')
    for ks in range(8):
        a(f's_mov_b32 s28, {ks*65536}')
        a(f'buffer_load_dwordx4 v[{Q+4*ks}:{Q+4*ks+3}], v{L+9}, s[4:7], s28 offen')
    a('s_lshl_b32 s27, s25, 5')
    a(f'v_add_u32 v{VQI}, s27, v{L+2}')
    a(f'v_lshlrev_b32 v{L+5}, 2, v{L+4}')
    a(f'v_sub_u32 v{VQI}, v{VQI}, v{L+5}')
    a(f'v_lshlrev_b32 v{L+5}, 4, v{L}')
    for j in range(2):
        a('s_lshl_b32 s27, s22, 3')
        a('s_lshl_b32 s28, s25, 1')
        a('s_add_u32 s27, s27, s28')
        a(f's_add_u32 s27, s27, {j}')
        a('s_lshl_b32 s27, s27, 16')
        a(f'v_add_u32 v{VGK+j}, s27, v{L+5}')
    a('s_lshl_b32 s27, s25, 12')
    a('s_lshl_b32 s28, s22, 7')
    a('s_add_u32 s27, s27, s28')
    a('s_lshl_b32 s27, s27, 5')
    a(f'v_add_u32 v{VGV}, s27, v{L+5}')
    for r in range(64):
        a(f'v_mov_b32 v{O+r}, 0')
    a(f'v_mov_b32 v{VM}, 0xf149f2ca')
    a(f'v_mov_b32 v{VL}, 0')
    a(f'v_mov_b32 v{VMC}, 0')
    c = (128 ** -0.5) * math.log2(math.e)
    a(f's_mov_b32 s30, 0x{f2u(c):x}')
    a(f's_mov_b32 s29, 0x{f2u(16.0/c):x}')
    a('s_lshl_b32 s31, s25, 12')
    a('s_lshl_b32 s67, s66, 14')
    a('s_add_u32 s31, s31, s67')
    a('s_lshl_b32 s32, s66, 11')
    a('s_lshl_b32 s33, s66, 19')
    a('s_lshl_b32 s37, s66, 6')
    a('s_add_u32 s36, s23, 1')

    def loadK(slot):
        out = []
        for j in range(2):
            out += [[f's_add_u32 m0, s31, {slot*PS + j*2048}', 's_nop 0', f'buffer_load_dwordx4 v{VGK+j}, s[8:11], s32 offen lds'],
                    [f'buffer_load_dwordx4 v{VGK+j}, s[8:11], s32 offen offset:1024 lds']]
        out[-1] = out[-1] + ['s_add_u32 s32, s32, 4096']
        return out
    def loadV(slot):
        out = [[f's_add_u32 m0, s31, {(2+slot)*PS}', 's_nop 0', f'buffer_load_dwordx4 v{VGV}, s[12:15], s33 offen lds']]
        for j in range(1, 4):
            out += [[f'buffer_load_dwordx4 v{VGV}, s[12:15], s33 offen offset:{j*1024} lds']]
        out[-1] = out[-1] + ['s_add_u32 s33, s33, 1048576']
        return out
    def flat(l):
        return [y for x in l for y in x]
    def kreads(t):
        f0 = F0 if t == 0 else F1
        return [f'ds_read_b128 v[{f0+4*ks}:{f0+4*ks+3}], v{VKR} offset:{ks*2048+t*1024}' for ks in range(8)]
    def vreads(half):
        f0 = F0 if half == 0 else F1
        out = []
        for s2 in range(2):
            s = half*2 + s2
            for dt in range(4):
                f = f0 + (s2*4+dt)*4
                out.append(f'ds_read_b128 v[{f}:{f+3}], v{VVR} offset:{s*4096+dt*1024}')
        return out
    def qk(Sn, t):
        f0 = F0 if t == 0 else F1
        out = []
        for ks in range(8):
            cin = '0' if ks == 0 else f'v[{Sn+t*16}:{Sn+t*16+15}]'
            out.append(f'v_mfma_f32_32x32x16_bf16 v[{Sn+t*16}:{Sn+t*16+15}], v[{f0+4*ks}:{f0+4*ks+3}], v[{Q+4*ks}:{Q+4*ks+3}], {cin}')
        return out
    def pv(half):
        f0 = F0 if half == 0 else F1
        out = []
        for s2 in range(2):
            s = half*2 + s2
            for dt in range(4):
                f = f0 + (s2*4+dt)*4
                out.append(f'v_mfma_f32_32x32x16_bf16 v[{O+dt*16}:{O+dt*16+15}], v[{f}:{f+3}], v[{P+4*s}:{P+4*s+3}], v[{O+dt*16}:{O+dt*16+15}]')
        return out
    def exp_part(Sc, t):
        out = []
        b = Sc + t*16; pb = P + t*8
        for r in range(16):
            out.append(f'v_fma_f32 v{b+r}, v{b+r}, s30, -v{VMC}')
            if r >= 2:
                out.append(f'v_exp_f32 v{b+r-2}, v{b+r-2}')
            if r >= 5 and (r & 1) == 1:
                p = (r-5)//2
                out.append(f'v_cvt_pk_bf16_f32 v{pb+p}, v{b+2*p}, v{b+2*p+1}')
        out.append(f'v_exp_f32 v{b+14}, v{b+14}')
        out.append(f'v_exp_f32 v{b+15}, v{b+15}')
        for p in range((15-5)//2 + 1, 8):
            out.append(f'v_cvt_pk_bf16_f32 v{pb+p}, v{b+2*p}, v{b+2*p+1}')
        return out
    def sum_part(Sc):
        out = [f'v_add_f32 v{T}, v{Sc}, v{Sc+1}']
        for r in range(2, 32):
            out.append(f'v_add_f32 v{T}, v{T}, v{Sc+r}')
        out.append(f'v_add_f32 v{VL}, v{VL}, v{T}')
        return out
    def max_part(Sn, masked):
        out = []
        if masked:
            out.append(f'v_subrev_u32 v{T}, s37, v{VQI}')
            out.append(f'v_mov_b32 v{T+1}, 0xff800000')
            for t in range(2):
                for r in range(16):
                    cst = t*32 + 8*(r>>2) + (r&3)
                    out.append(f'v_cmp_gt_i32 vcc, {cst}, v{T}')
                    out.append('s_nop 1')
                    out.append(f'v_cndmask_b32 v{Sn+t*16+r}, v{Sn+t*16+r}, v{T+1}, vcc')
        out.append(f'v_max3_f32 v{T}, v{Sn}, v{Sn+1}, v{Sn+2}')
        for r in range(3, 31, 2):
            out.append(f'v_max3_f32 v{T}, v{T}, v{Sn+r}, v{Sn+r+1}')
        out.append(f'v_max_f32 v{T}, v{T}, v{Sn+31}')
        out.append(f'v_mov_b32 v{T+1}, v{T}')
        out.append('s_nop 1')
        out.append(f'v_permlane32_swap_b32 v{T+1}, v{T}')
        out.append(f'v_max_f32 v{T}, v{T}, v{T+1}')
        out.append(f'v_sub_f32 v{T+1}, v{T}, v{VM}')
        out.append(f'v_cmp_lt_f32 vcc, s29, v{T+1}')
        return out
    def rescale_check():
        nors = a.newlabel('A_nors')
        a('s_nop 0')
        a(f's_cbranch_vccz {nors}')
        a('s_nop 15')
        a('s_nop 15')
        a(f'v_max_f32 v{T}, v{T}, v{VM}')
        a(f'v_sub_f32 v{T+1}, v{VM}, v{T}')
        a(f'v_mul_f32 v{T+1}, s30, v{T+1}')
        a(f'v_exp_f32 v{T+1}, v{T+1}')
        a(f'v_mov_b32 v{VM}, v{T}')
        a(f'v_mul_f32 v{VMC}, s30, v{T}')
        a(f'v_mul_f32 v{VL}, v{VL}, v{T+1}')
        for r in range(64):
            a(f'v_mul_f32 v{O+r}, v{O+r}, v{T+1}')
        a('s_nop 1')
        a.label(nors)

    for x in flat(loadK(0)) + flat(loadV(0)) + flat(loadK(1)): a(x)
    a('s_waitcnt vmcnt(8)')
    a('s_barrier')
    a(f'v_add_u32 v{VKR}, s67, v{VKA}')
    for x in kreads(0) + kreads(1): a(x)
    a('s_waitcnt lgkmcnt(0)')
    for x in qk(SA, 0) + qk(SA, 1): a(x)
    a('s_nop 15')
    a('s_nop 7')
    m0l = a.newlabel('A_pm'); m0e = a.newlabel('A_pe')
    a('s_cmp_eq_u32 s23, 0')
    a(f's_cbranch_scc1 {m0l}')
    for x in max_part(SA, False): a(x)
    a(f's_branch {m0e}')
    a.label(m0l)
    for x in max_part(SA, True): a(x)
    a.label(m0e)
    rescale_check()
    a('s_mov_b32 s35, 0')
    loop = a.newlabel('A_loop'); fin = a.newlabel('A_fin')
    a.label(loop)
    for p in range(2):
        Sc, Sn = (SA, SB) if p == 0 else (SB, SA)
        a('s_waitcnt vmcnt(0)')
        a('s_barrier')
        a(f's_add_u32 s65, s67, {(1-p)*PS}')
        a(f'v_add_u32 v{VKR}, s65, v{VKA}')
        a(f's_add_u32 s65, s67, {(2+p)*PS}')
        a(f'v_add_u32 v{VVR}, s65, v{VKA}')
        a('s_add_u32 s38, s35, 1')
        a('s_cmp_ge_u32 s38, s36')
        last = a.newlabel('A_last'); msk = a.newlabel('A_msk'); nxt = a.newlabel('A_nxt')
        a(f's_cbranch_scc1 {last}')
        a('s_cmp_ge_u32 s38, s23')
        a(f's_cbranch_scc1 {msk}')
        for variant in ('un', 'ma', 'last'):
            if variant == 'ma': a.label(msk)
            if variant == 'last': a.label(last)
            ep0 = exp_part(Sc, 0); ep1 = exp_part(Sc, 1)
            if variant != 'last':
                for x in kreads(0) + kreads(1): a(x)
                lead = ep0[:10]; rest = ep0[10:]
                for x in lead: a(x)
                a('s_waitcnt lgkmcnt(8)')
                half = len(rest)//2
                interleave(a, qk(Sn, 0), rest[:half] + flat(loadV(1-p)))
                a('s_waitcnt lgkmcnt(0)')
                interleave(a, qk(Sn, 1), vreads(0) + rest[half:])
                a('s_waitcnt lgkmcnt(0)')
                a('s_nop 1')
                interleave(a, pv(0), vreads(1) + ep1)
                a('s_waitcnt lgkmcnt(0)')
                a('s_nop 1')
                interleave(a, pv(1), flat(loadK(p)) + sum_part(Sc) + max_part(Sn, variant == 'ma'))
                rescale_check()
                a(f's_branch {nxt}')
            else:
                for x in vreads(0) + vreads(1): a(x)
                for x in ep0 + ep1: a(x)
                a('s_waitcnt lgkmcnt(0)')
                a('s_nop 1')
                interleave(a, pv(0) + pv(1), sum_part(Sc))
                a(f's_branch {fin}')
        a.label(nxt)
        a('s_add_u32 s35, s35, 1')
    a(f's_branch {loop}')
    a.label(fin)
    a('s_nop 15')
    a('s_nop 7')
    a('s_waitcnt vmcnt(0)')
    a('s_barrier')
    G0 = a.newlabel('A_g0'); MERGED = a.newlabel('A_mg')
    a(f'v_and_b32 v{F0}, 63, v{VTID}')
    a(f'v_lshlrev_b32 v{F0}, 4, v{F0}')
    a('s_mul_i32 s27, s25, 17408')
    a(f'v_add_u32 v{F0}, s27, v{F0}')
    a('s_cmp_eq_u32 s66, 0')
    a(f's_cbranch_scc1 {G0}')
    for q in range(16):
        a(f'ds_write_b128 v{F0}, v[{O+4*q}:{O+4*q+3}] offset:{q*1024}')
    a(f'v_mov_b32 v{F0+4}, v{VM}')
    a(f'v_mov_b32 v{F0+5}, v{VL}')
    a(f'ds_write_b64 v{F0}, v[{F0+4}:{F0+5}] offset:16384')
    a('s_waitcnt lgkmcnt(0)')
    a('s_barrier')
    a(f's_branch {MERGED}')
    a.label(G0)
    a('s_barrier')
    for q in range(16):
        a(f'ds_read_b128 v[{SA+4*q}:{SA+4*q+3}], v{F0} offset:{q*1024}')
    a(f'ds_read_b64 v[{F0+4}:{F0+5}], v{F0} offset:16384')
    a('s_waitcnt lgkmcnt(0)')
    a(f'v_max_f32 v{T}, v{VM}, v{F0+4}')
    a(f'v_sub_f32 v{F0+6}, v{VM}, v{T}')
    a(f'v_sub_f32 v{F0+7}, v{F0+4}, v{T}')
    a(f'v_mul_f32 v{F0+6}, s30, v{F0+6}')
    a(f'v_mul_f32 v{F0+7}, s30, v{F0+7}')
    a(f'v_exp_f32 v{F0+6}, v{F0+6}')
    a(f'v_exp_f32 v{F0+7}, v{F0+7}')
    a('s_nop 0')
    a(f'v_mul_f32 v{VL}, v{VL}, v{F0+6}')
    a(f'v_fmac_f32 v{VL}, v{F0+5}, v{F0+7}')
    a(f'v_mov_b32 v{T}, v{VL}')
    a('s_nop 1')
    a(f'v_permlane32_swap_b32 v{T}, v{VL}')
    a(f'v_add_f32 v{T}, v{T}, v{VL}')
    a(f'v_rcp_f32 v{T}, v{T}')
    a('s_nop 0')
    a(f'v_mul_f32 v{F0+6}, v{F0+6}, v{T}')
    a(f'v_mul_f32 v{F0+7}, v{F0+7}, v{T}')
    a(f'v_add_u32 v{T+1}, s39, v{VKA}')
    for r in range(64):
        a(f'v_mul_f32 v{O+r}, v{O+r}, v{F0+6}')
        a(f'v_fmac_f32 v{O+r}, v{SA+r}, v{F0+7}')
    for dt in range(4):
        for grp in range(2):
            d = F1 + ((dt*2+grp) % 4)*4
            for pp in range(4):
                a(f'v_cvt_pk_bf16_f32 v{d+pp}, v{O+dt*16+grp*8+2*pp}, v{O+dt*16+grp*8+2*pp+1}')
            a(f's_mov_b32 s28, {(dt*2+grp)*65536}')
            a(f'buffer_store_dwordx4 v[{d}:{d+3}], v{T+1}, s[16:19], s28 offen')
    a.label(MERGED)
    a('s_cmp_lg_u32 s60, 0')
    a(f's_cbranch_scc1 {done}')
    a('s_mov_b32 s60, 1')
    a('s_barrier')
    a(f's_branch {PASS}')
    a.label(done)
    a('s_endpgm')
gen_attn.launch = ('attn_kernel', 256, 512, 4*PS, 256, gen_attn)
```

```python
from asmlib import *
from layout import *
import struct

def f2u(x):
    return struct.unpack('<I', struct.pack('<f', x))[0]
def log2(x):
    return x.bit_length()-1

class G:
    def __init__(s, WR, WT, nti, ntj, NS):
        s.WR, s.WT, s.nti, s.ntj, s.NS = WR, WT, nti, ntj, NS
        s.nw = WR*WT
        s.TR = WR*nti*32; s.TC = WT*ntj*32
        s.RB = s.TR*64; s.TB = 32*s.TC*2
        s.STAGE = s.RB + s.TB
        s.nR = s.TR//16//s.nw
        s.nT = s.TC//16//s.nw
        s.rpi = 1024//(s.TC*2)
        s.lpr = 64//s.rpi
        s.ACC = 0
        s.FR = nti*ntj*16
        s.FSZ = (nti+ntj)*4
        s.VRA = s.FR + 2*s.FSZ
        s.VTA = s.VRA + NS
        s.VGR = s.VTA + NS*ntj
        s.VGT = s.VGR + s.nR
        s.L = s.VGT + s.nT
        s.PK = (s.L + 12 + 3)//4*4
        s.TID = s.PK + 16
        s.NV = s.PK + 17

def setup_lds_addrs(a, g, kperm, swap=False):
    RW, TW = ('s28', 's27') if swap else ('s27', 's28')
    L = g.L
    if not swap:
        a(f'v_mov_b32 v{g.TID}, v0')
    a(f'v_and_b32 v{L}, 63, v{g.TID}')
    a(f'v_lshrrev_b32 v{L+1}, 6, v{g.TID}')
    a('s_nop 0')
    a(f'v_readfirstlane_b32 s24, v{L+1}')
    a(f's_lshr_b32 s27, s24, {log2(g.WT)}')
    a(f's_and_b32 s28, s24, {g.WT-1}')
    a(f'v_and_b32 v{L+2}, 31, v{L}')
    a(f's_mul_i32 s25, {RW}, {g.nti*32}')
    a(f'v_add_u32 v{L+2}, s25, v{L+2}')
    a(f'v_lshlrev_b32 v{L+2}, 5, v{L+2}')
    a(f'v_lshrrev_b32 v{L+3}, 5, v{L}')
    a(f'v_bfe_u32 v{L+4}, v{L}, 3, 1')
    a(f'v_xor_b32 v{L+4}, v{L+3}, v{L+4}')
    a(f'v_lshl_add_u32 v{g.VRA}, v{L+4}, 4, v{L+2}')
    for st in range(1, g.NS):
        a(f'v_add_u32 v{g.VRA+st}, {st*g.STAGE}, v{g.VRA}')
    rowb = g.TC*2
    a(f'v_bfe_u32 v{L+5}, v{L}, 2, 2')
    a(f'v_lshl_add_u32 v{L+6}, v{L+3}, {2 if kperm else 3}, v{L+5}')
    a(f'v_mul_u32_u24 v{L+6}, {rowb}, v{L+6}')
    a(f'v_bfe_u32 v{L+7}, v{L}, 4, 1')
    a(f'v_lshlrev_b32 v{L+7}, 1, v{L+7}')
    a(f'v_bfe_u32 v{L+8}, v{L}, 1, 1')
    a(f'v_add_u32 v{L+7}, v{L+7}, v{L+8}')
    a(f's_mul_i32 s25, {TW}, {g.ntj*4}')
    a(f'v_add_u32 v{L+7}, s25, v{L+7}')
    if g.TC >= 128:
        a(f'v_lshlrev_b32 v{L+8}, 2, v{L+5}')
    else:
        a(f'v_bfe_u32 v{L+8}, v{L}, 3, 1')
        a(f'v_lshlrev_b32 v{L+8}, 2, v{L+8}')
    a(f'v_and_b32 v{L+9}, 1, v{L}')
    a(f'v_lshlrev_b32 v{L+9}, 3, v{L+9}')
    a(f'v_add_u32 v{L+6}, v{L+6}, v{L+9}')
    a(f'v_add_u32 v{L+6}, {g.RB}, v{L+6}')
    for tj in range(g.ntj):
        a(f'v_add_u32 v{L+9}, {4*tj}, v{L+7}')
        a(f'v_xor_b32 v{L+9}, v{L+9}, v{L+8}')
        a(f'v_lshl_add_u32 v{g.VTA+tj}, v{L+9}, 4, v{L+6}')
        for st in range(1, g.NS):
            a(f'v_add_u32 v{g.VTA+st*g.ntj+tj}, {st*g.STAGE}, v{g.VTA+tj}')
    a(f's_mul_i32 s30, s24, {g.nR*1024}')
    a(f's_mul_i32 s31, s24, {g.nT*1024}')
    a(f's_add_u32 s31, s31, {g.RB}')

def setup_dma(a, g, NR, sT, rbase, cbase, rawR=0):
    L = g.L
    nrb = g.TR//32
    if rawR:
        a(f'v_lshrrev_b32 v{L+4}, 1, v{L}')
        a(f'v_bfe_u32 v{L+5}, v{L}, 4, 1')
        a(f'v_and_b32 v{L+6}, 1, v{L}')
        a(f'v_xor_b32 v{L+5}, v{L+5}, v{L+6}')
        a(f'v_mul_u32_u24 v{L+4}, {rawR}, v{L+4}')
        a(f'v_lshl_add_u32 v{L+4}, v{L+5}, 4, v{L+4}')
        for j in range(g.nR):
            a(f's_mul_i32 s25, s24, {g.nR}')
            a(f's_add_u32 s25, s25, {j}')
            a(f's_lshr_b32 s26, s25, {log2(nrb)}')
            a(f's_and_b32 s25, s25, {nrb-1}')
            a(f's_lshl_b32 s25, s25, 5')
            a(f's_add_u32 s25, s25, {rbase}')
            a(f's_mul_i32 s25, s25, {rawR}')
            a(f's_lshl_b32 s26, s26, 5')
            a(f's_add_u32 s25, s25, s26')
            a(f'v_add_u32 v{g.VGR+j}, s25, v{L+4}')
    if not rawR: a(f'v_lshlrev_b32 v{L+4}, 4, v{L}')
    for j in range(0 if rawR else g.nR):
        a(f's_mul_i32 s25, s24, {g.nR}')
        a(f's_add_u32 s25, s25, {j}')
        a(f's_lshr_b32 s26, s25, {log2(nrb)}')
        a(f's_and_b32 s25, s25, {nrb-1}')
        a(f's_mul_i32 s26, s26, {NR}')
        a(f's_lshl_b32 s25, s25, 5')
        a(f's_add_u32 s25, s25, s26')
        a(f's_add_u32 s25, s25, {rbase}')
        a(f's_lshl_b32 s25, s25, 5')
        a(f'v_add_u32 v{g.VGR+j}, s25, v{L+4}')
    a(f's_mov_b32 s26, {sT}')
    a(f's_lshl_b32 s29, {cbase}, 1')
    for j in range(g.nT):
        a(f's_mul_i32 s25, s24, {g.nT*g.rpi}')
        a(f's_add_u32 s25, s25, {j*g.rpi}')
        a(f'v_lshrrev_b32 v{L+4}, {log2(g.lpr)}, v{L}')
        a(f'v_add_u32 v{L+4}, s25, v{L+4}')
        if g.TC >= 128:
            a(f'v_and_b32 v{L+5}, 3, v{L+4}')
        else:
            a(f'v_bfe_u32 v{L+5}, v{L+4}, 1, 1')
        a(f'v_lshlrev_b32 v{L+5}, 2, v{L+5}')
        a(f'v_and_b32 v{L+6}, {g.lpr-1}, v{L}')
        a(f'v_xor_b32 v{L+5}, v{L+5}, v{L+6}')
        a(f'v_mul_lo_u32 v{L+4}, v{L+4}, s26')
        a(f'v_lshl_add_u32 v{L+4}, v{L+5}, 4, v{L+4}')
        a(f'v_add_u32 v{g.VGT+j}, s29, v{L+4}')

def zero_acc(a, g):
    for r in range(g.nti*g.ntj*16):
        a(f'v_mov_b32 v{g.ACC+r}, 0')

def main_loop(a, g, ks, sT, mode, kperm, NR, k0R=0, k0T=0, stamp=False, mid=None, rawR=0):
    nd = g.nR + g.nT
    a(f's_mov_b32 s32, {k0R}')
    a(f's_mov_b32 s33, {k0T}')
    rowb = g.TC*2
    def dma_list(st):
        out = []
        for j in range(g.nR):
            out.append([f's_add_u32 m0, s30, {st*g.STAGE + j*1024}', 's_nop 0',
                        f'buffer_load_dwordx4 v{g.VGR+j}, s[4:7], s32 offen lds'])
        for j in range(g.nT):
            out.append([f's_add_u32 m0, s31, {st*g.STAGE + j*1024}', 's_nop 0',
                        f'buffer_load_dwordx4 v{g.VGT+j}, s[8:11], s33 offen lds'])
        out[-1] = out[-1] + [f's_add_u32 s32, s32, {64 if rawR else NR*64}', f's_add_u32 s33, s33, {32*sT}']
        return out
    def read_list(st, kk):
        out = []
        fb = g.FR + kk*g.FSZ
        for i in range(g.ntj):
            for h in range(2):
                off = kk*16*rowb + (h*8*rowb if kperm else h*4*rowb)
                r0 = fb + g.nti*4 + i*4 + h*2
                out.append([f'ds_read_b64_tr_b16 v[{r0}:{r0+1}], v{g.VTA+st*g.ntj+i} offset:{off}'])
        for i in range(g.nti):
            out.append([f'ds_read_b128 v[{fb+i*4}:{fb+i*4+3}], v{g.VRA+st} offset:{kk*g.TR*32+i*1024}'])
        return out
    def mfma_list(kk):
        out = []
        fb = g.FR + kk*g.FSZ
        for ti in range(g.nti):
            for tj in range(g.ntj):
                rf = f'v[{fb+ti*4}:{fb+ti*4+3}]'
                tf = f'v[{fb+g.nti*4+tj*4}:{fb+g.nti*4+tj*4+3}]'
                if mode == 'RT':
                    acc = g.ACC + (ti*g.ntj+tj)*16; A, B = tf, rf
                elif mode == 'TR':
                    acc = g.ACC + (ti*g.ntj+tj)*16; A, B = rf, tf
                elif mode == 'TRx':
                    acc = g.ACC + (tj*g.ntj+ti)*16; A, B = rf, tf
                out.append(f'v_mfma_f32_32x32x16_bf16 v[{acc}:{acc+15}], {A}, {B}, v[{acc}:{acc+15}]')
        return out
    def interleave(mf, fillers):
        n = len(mf); m = len(fillers); idx = 0
        for i, x in enumerate(mf):
            a(x)
            tgt = min(m, ((i+1)*m*2 + n - 1)//n)
            while idx < tgt:
                for y in fillers[idx]: a(y)
                idx += 1
        while idx < m:
            for y in fillers[idx]: a(y)
            idx += 1
    for st in range(g.NS):
        for grp in dma_list(st):
            for y in grp: a(y)
    if mid: mid()
    a(f's_waitcnt vmcnt({nd*(g.NS-1)})')
    a('s_barrier')
    for grp in read_list(0, 0):
        for y in grp: a(y)
    a('s_mov_b32 s34, 0')
    loop = a.newlabel('G_loop'); end = a.newlabel('G_end')
    a.label(loop)
    for st in range(g.NS):
        tail = a.newlabel('G_tail'); cont = a.newlabel('G_cont')
        def stp(r):
            if stamp:
                sk = a.newlabel('stx')
                a('s_cmp_lg_u32 s34, 8')
                a(f's_cbranch_scc1 {sk}')
                a(f's_memtime s[{r}:{r+1}]')
                a.label(sk)
        stp(60)
        a('s_waitcnt lgkmcnt(0)')
        interleave(mfma_list(0), read_list(st, 1))
        stp(62)
        a(f's_add_u32 s35, s34, {g.NS}')
        a(f's_cmp_ge_u32 s35, {ks}')
        a(f's_cbranch_scc1 {tail}')
        a(f's_waitcnt vmcnt({nd*(g.NS-2)}) lgkmcnt(0)')
        a('s_barrier')
        stp(64)
        rl = read_list((st+1) % g.NS, 0); dl = dma_list(st)
        fl = []
        for i in range(max(len(rl), len(dl))):
            if i < len(rl): fl.append(rl[i])
            if i < len(dl): fl.append(dl[i])
        interleave(mfma_list(1), fl)
        stp(66)
        a(f's_branch {cont}')
        a.label(tail)
        a('s_waitcnt vmcnt(0) lgkmcnt(0)')
        a('s_barrier')
        interleave(mfma_list(1), read_list((st+1) % g.NS, 0))
        a.label(cont)
        a('s_add_u32 s34, s34, 1')
        a(f's_cmp_ge_u32 s34, {ks}')
        a(f's_cbranch_scc1 {end}')
    a(f's_branch {loop}')
    a.label(end)
    a('s_waitcnt lgkmcnt(0)')

def pack8(a, dst, src):
    for p in range(4):
        a(f'v_cvt_pk_bf16_f32 v{dst+p}, v{src+2*p}, v{src+2*p+1}')

def gelu_regs(a, g, acc, tj):
    L = g.L; BF = g.FR
    for r in range(16):
        x = f'v{acc+r}'; t = f'v{L+4+(r&3)}'
        a(f'v_cvt_pk_bf16_f32 {x}, {x}, {x}')
        a(f'v_lshlrev_b32 {x}, 16, {x}')
        a(f'v_add_f32 {x}, {x}, v{BF+tj*16+r}')
        a(f'v_cvt_pk_bf16_f32 {x}, {x}, {x}')
        a(f'v_lshlrev_b32 {x}, 16, {x}')
        a(f'v_mul_f32 {t}, {x}, {x}')
        a(f'v_mul_f32 {t}, s36, {t}')
        a(f'v_add_f32 {t}, s37, {t}')
        a(f'v_mul_f32 {t}, {t}, {x}')
        a(f'v_mul_f32 {t}, s38, {t}')
        a(f'v_exp_f32 {t}, {t}')
        a('s_nop 0')
        a(f'v_add_f32 {t}, 1.0, {t}')
        a(f'v_rcp_f32 {t}, {t}')
        a('s_nop 0')
        a(f'v_mul_f32 {x}, {x}, {t}')

def epilogue(a, g, mode, NR, gelu=False):
    L = g.L
    if mode == 'RT':
        rw, rn, rb = 's27', g.nti, 's22'; cw, cn, cb = 's28', g.ntj, 's23'
    else:
        rw, rn, rb = 's28', g.ntj, 's23'; cw, cn, cb = 's27', g.nti, 's22'
    a(f'v_and_b32 v{L+2}, 31, v{L}')
    a(f's_mul_i32 s25, {rw}, {rn*32}')
    a(f's_add_u32 s25, s25, {rb}')
    a(f'v_add_u32 v{L+2}, s25, v{L+2}')
    a(f'v_lshlrev_b32 v{L+2}, 5, v{L+2}')
    a(f'v_lshrrev_b32 v{L+3}, 5, v{L}')
    a(f'v_bfe_u32 v{L+8}, v{L}, 3, 1')
    a(f'v_xor_b32 v{L+8}, v{L+3}, v{L+8}')
    a(f'v_lshl_add_u32 v{L+2}, v{L+8}, 4, v{L+2}')
    a(f's_mul_i32 s25, {cw}, {cn*32}')
    a(f's_add_u32 s25, s25, {cb}')
    a(f's_lshr_b32 s26, s25, 4')
    a(f's_mul_i32 s26, s26, {NR*32}')
    a(f'v_add_u32 v{L+2}, s26, v{L+2}')
    if gelu:
        a(f's_lshl_b32 s25, s25, 1')
        a(f'v_lshlrev_b32 v{L+8}, 3, v{L+3}')
        a(f'v_add_u32 v{L+8}, s25, v{L+8}')
        B = g.PK
        for tj in range(g.ntj):
            for q in range(4):
                a(f'buffer_load_dwordx2 v[{B+(tj*4+q)*2}:{B+(tj*4+q)*2+1}], v{L+8}, s[16:19], 0 offen offset:{tj*64+q*16}')
        a('s_waitcnt vmcnt(0)')
        BF = g.FR
        for gi in range(4*g.ntj):
            a(f'v_lshlrev_b32 v{BF+4*gi}, 16, v{B+2*gi}')
            a(f'v_and_b32 v{BF+4*gi+1}, 0xffff0000, v{B+2*gi}')
            a(f'v_lshlrev_b32 v{BF+4*gi+2}, 16, v{B+2*gi+1}')
            a(f'v_and_b32 v{BF+4*gi+3}, 0xffff0000, v{B+2*gi+1}')
        a(f's_mov_b32 s36, 0x{f2u(0.7978845608028654*0.044715):x}')
        a(f's_mov_b32 s37, 0x{f2u(0.7978845608028654):x}')
        a(f's_mov_b32 s38, 0x{f2u(-2.0*1.4426950408889634):x}')
    cnt = 0
    for ti in range(g.nti):
        for tj in range(g.ntj):
            acc = g.ACC + (ti*g.ntj+tj)*16
            if gelu:
                gelu_regs(a, g, acc, tj)
            rt, ct = (ti, tj) if mode == 'RT' else (tj, ti)
            for grp in range(2):
                dreg = g.PK + (cnt % 4)*4; cnt += 1
                pack8(a, dreg, acc + grp*8)
                a(f's_mov_b32 s39, {(ct*2+grp)*NR*32}')
                a(f'buffer_store_dwordx4 v[{dreg}:{dreg+3}], v{L+2}, s[12:15], s39 offen offset:{rt*1024}')

GA = G(2, 4, 4, 2, 4)
GU = G(2, 4, 2, 2, 4)
NU = 40

def gen_gemm1(a, name):
    a.raw('.p2align 8')
    a.label(name)
    done = a.newlabel('G1_done')
    LQ = a.newlabel('G1_Q'); LK = a.newlabel('G1_K'); LV = a.newlabel('G1_V')
    a('s_load_dwordx4 s[40:43], s[0:1], 8')
    a('s_load_dwordx4 s[44:47], s[0:1], 24')
    a('s_load_dwordx4 s[48:51], s[0:1], 56')
    a('s_load_dwordx2 s[52:53], s[0:1], 104')
    a(f's_cmp_ge_u32 s2, {NU+384}')
    a(f's_cbranch_scc1 {done}')
    a('s_waitcnt lgkmcnt(0)')
    a(f's_cmp_ge_u32 s2, {NU}')
    a(f's_cbranch_scc1 {LQ}')
    a('s_cmp_ge_u32 s2, 35')
    a(f's_cbranch_scc1 {done}')
    a('s_mul_hi_u32 s20, s2, 0x33333334')
    a('s_mul_i32 s21, s20, 5')
    a('s_sub_u32 s21, s2, s21')
    a('s_lshl_b32 s22, s21, 7')
    a('s_lshl_b32 s23, s20, 8')
    srd(a, 4, 52, HT_SZ, HT_OFF)
    srd(a, 8, 48, 2048*1728*2)
    srd(a, 12, 52, U_SZ, U_OFF)
    srd(a, 16, 50, 1728*2)
    g = GU
    setup_lds_addrs(a, g, False)
    setup_dma(a, g, 640, 3456, 's22', 's23')
    zero_acc(a, g)
    main_loop(a, g, 64, 3456, 'RT', False, 640)
    a('s_nop 15')
    a('s_lshl_b32 s25, s28, 6')
    a('s_add_u32 s25, s25, s23')
    a('s_cmp_ge_u32 s25, 1728')
    a(f's_cbranch_scc1 {done}')
    epilogue(a, g, 'RT', 640, gelu=True)
    a('s_endpgm')
    g = GA
    def decode(base):
        import os
        RB = int(os.environ.get('RB', '1'))
        a(f's_sub_u32 s20, s2, {base}')
        a('s_and_b32 s21, s20, 7')
        a('s_lshr_b32 s20, s20, 3')
        a(f's_and_b32 s22, s21, {(8>>RB)-1}')
        a(f's_lshl_b32 s22, s22, {RB}')
        a(f's_and_b32 s25, s20, {(1<<RB)-1}')
        a('s_add_u32 s22, s22, s25')
        a('s_lshl_b32 s22, s22, 8')
        a(f's_lshr_b32 s23, s21, {3-RB}')
        a(f's_lshl_b32 s23, s23, {4-RB}')
        a(f's_lshr_b32 s25, s20, {RB}')
        a('s_add_u32 s23, s23, s25')
        a('s_lshl_b32 s23, s23, 8')
    import os
    ST = os.environ.get('STAMP')
    def body(ks, mode):
        setup_lds_addrs(a, g, False)
        setup_dma(a, g, 2048, 8192, 's22', 's23')
        zero_acc(a, g)
        main_loop(a, g, ks, 8192, mode, False, 2048, stamp=bool(ST))
        a('s_nop 15')
    def stamp_out():
        if not ST: return
        a('s_waitcnt vmcnt(0)')
        a('s_load_dwordx2 s[70:71], s[0:1], 96')
        a('s_waitcnt lgkmcnt(0)')
        srd(a, 72, 70, 256)
        a('s_sub_u32 s62, s62, s60')
        a('s_sub_u32 s64, s64, s60')
        a('s_sub_u32 s66, s66, s60')
        a('v_mov_b32 v0, s62')
        a('v_mov_b32 v1, s64')
        a('v_mov_b32 v2, s66')
        a('v_mov_b32 v3, s60')
        a('s_and_b32 s76, s2, 15')
        a('s_lshl_b32 s76, s76, 4')
        a('v_mov_b32 v4, s76')
        a('s_cmp_lg_u32 s24, 0')
        sk = a.newlabel('stk')
        a(f's_cbranch_scc1 {sk}')
        a('v_cmp_eq_u32 vcc, 0, v%d' % g.L)
        a('s_and_saveexec_b64 s[78:79], vcc')
        a('buffer_store_dwordx4 v[0:3], v4, s[72:75], 0 offen')
        a.label(sk)
    a.label(LQ)
    a(f's_cmp_ge_u32 s2, {NU+128}')
    a(f's_cbranch_scc1 {LK}')
    decode(NU)
    srd(a, 4, 52, XN_SZ, XN_OFF)
    srd(a, 8, 42, 640*8192)
    srd(a, 12, 52, BIG_SZ, Q_OFF)
    body(20, 'RT')
    epilogue(a, g, 'RT', 2048)
    a('s_endpgm')
    a.label(LK)
    a(f's_cmp_ge_u32 s2, {NU+256}')
    a(f's_cbranch_scc1 {LV}')
    decode(NU+128)
    srd(a, 4, 52, CKV_SZ, CKV_OFF)
    srd(a, 8, 44, 512*8192)
    srd(a, 12, 52, BIG_SZ, K_OFF)
    body(16, 'RT')
    epilogue(a, g, 'RT', 2048)
    stamp_out()
    a('s_endpgm')
    a.label(LV)
    decode(NU+256)
    srd(a, 4, 52, CKV_SZ, CKV_OFF)
    srd(a, 8, 46, 512*8192)
    srd(a, 12, 52, BIG_SZ, VT_OFF)
    body(16, 'TR')
    epilogue(a, g, 'TR', 4096)
    a.label(done)
    a('s_endpgm')
gen_gemm1.launch = ('gemm1_kernel', NU+384, 512, GA.STAGE*GA.NS, max(GA.NV, GU.NV), gen_gemm1)

GF = G(2, 2, 2, 2, 4)
PART_OFF = 0x6000000
PART_SZ = 3*2048*640*4

def gen_final(a, name):
    g = GF
    a.raw('.p2align 8')
    a.label(name)
    done = a.newlabel('F_done'); EP = a.newlabel('F_ep')
    a('s_load_dwordx2 s[42:43], s[0:1], 40')
    a('s_load_dwordx2 s[44:45], s[0:1], 72')
    a('s_load_dwordx2 s[52:53], s[0:1], 104')
    a('s_cmp_ge_u32 s2, 240')
    a(f's_cbranch_scc1 {done}')
    a('s_and_b32 s20, s2, 7')
    a('s_lshr_b32 s21, s2, 3')
    a('s_mul_hi_u32 s36, s21, 0x55555556')
    a('s_mul_i32 s37, s36, 3')
    a('s_sub_u32 s37, s21, s37')
    a('s_and_b32 s22, s36, 1')
    a('s_lshl_b32 s20, s20, 1')
    a('s_add_u32 s22, s22, s20')
    a('s_lshl_b32 s22, s22, 7')
    a('s_lshr_b32 s23, s36, 1')
    a('s_lshl_b32 s23, s23, 7')
    a('s_waitcnt lgkmcnt(0)')
    setup_lds_addrs(a, g, True)
    zero_acc(a, g)
    srd(a, 4, 52, BIG_SZ, CTX_OFF)
    srd(a, 8, 42, 4096*1280)
    setup_dma(a, g, 2048, 1280, 's22', 's23')
    a('s_mul_i32 s38, s37, 60')
    a(f's_mul_i32 s39, s38, {2048*64}')
    a(f's_mul_i32 s38, s38, {32*1280}')
    a('s_cmp_eq_u32 s37, 2')
    a('s_cselect_b32 s54, 8, 60')
    main_loop(a, g, 's54', 1280, 'RT', True, 2048, k0R='s39', k0T='s38')
    a('s_cmp_lg_u32 s37, 2')
    a(f's_cbranch_scc1 {EP}')
    a('s_barrier')
    srd(a, 4, 52, U_SZ, U_OFF)
    srd(a, 8, 44, 1728*4096)
    setup_lds_addrs(a, g, True, swap=True)
    setup_dma(a, g, 640, 4096, 's23', 's22')
    main_loop(a, g, 54, 4096, 'TRx', True, 640)
    a.label(EP)
    a('s_nop 15')
    L = g.L
    srd(a, 12, 52, PART_SZ, PART_OFF)
    a(f'v_and_b32 v{L+2}, 31, v{L}')
    a('s_lshl_b32 s25, s27, 6')
    a('s_add_u32 s25, s25, s22')
    a(f'v_add_u32 v{L+2}, s25, v{L+2}')
    a(f'v_lshlrev_b32 v{L+2}, 5, v{L+2}')
    a(f'v_lshrrev_b32 v{L+3}, 5, v{L}')
    a(f'v_lshl_add_u32 v{L+2}, v{L+3}, 4, v{L+2}')
    a('s_lshl_b32 s25, s28, 6')
    a('s_add_u32 s25, s25, s23')
    a('s_lshr_b32 s25, s25, 3')
    a('s_lshl_b32 s25, s25, 16')
    a(f's_mul_i32 s26, s37, {2048*640*4}')
    a('s_add_u32 s25, s25, s26')
    a(f'v_add_u32 v{L+2}, s25, v{L+2}')
    for ti in range(2):
        for tj in range(2):
            acc = g.ACC + (ti*2+tj)*16
            for q in range(4):
                a(f's_mov_b32 s39, {(tj*4+q)*65536}')
                a(f'buffer_store_dwordx4 v[{acc+4*q}:{acc+4*q+3}], v{L+2}, s[12:15], s39 offen offset:{ti*1024}')
    a.label(done)
    a('s_endpgm')
gen_final.launch = ('final_kernel', 240, 256, GF.STAGE*GF.NS, GF.NV, gen_final)

def gen_comb(a, name):
    a.raw('.p2align 8')
    a.label(name)
    done = a.newlabel('C_done')
    a('s_load_dwordx2 s[40:41], s[0:1], 0')
    a('s_load_dwordx4 s[44:47], s[0:1], 80')
    a('s_load_dwordx2 s[52:53], s[0:1], 104')
    a('s_cmp_ge_u32 s2, 640')
    a(f's_cbranch_scc1 {done}')
    a('s_mul_hi_u32 s3, s2, 0x1999999a')
    a('s_mul_i32 s4, s3, 10')
    a('s_sub_u32 s4, s2, s4')
    a('v_lshrrev_b32 v1, 3, v0')
    a('s_lshl_b32 s3, s3, 5')
    a('v_add_u32 v1, s3, v1')
    a('v_and_b32 v2, 7, v0')
    a('s_lshl_b32 s4, s4, 3')
    a('v_add_u32 v2, s4, v2')
    a('v_lshlrev_b32 v3, 16, v2')
    a('v_lshl_add_u32 v3, v1, 5, v3')
    a('v_mul_u32_u24 v4, 1280, v1')
    a('v_lshl_add_u32 v4, v2, 4, v4')
    a('v_lshlrev_b32 v5, 1, v1')
    a('s_waitcnt lgkmcnt(0)')
    srd(a, 8, 52, PART_SZ, PART_OFF)
    srd(a, 12, 40, 2048*1280)
    srd(a, 16, 44, 4096)
    srd(a, 20, 46, 2048*1280)
    a('s_mov_b32 s5, %d' % (2048*640*4))
    a('s_mov_b32 s6, %d' % (2*2048*640*4))
    a('buffer_load_dwordx4 v[8:11], v3, s[8:11], 0 offen')
    a('buffer_load_dwordx4 v[12:15], v3, s[8:11], 0 offen offset:16')
    a('buffer_load_dwordx4 v[16:19], v3, s[8:11], s5 offen')
    a('buffer_load_dwordx4 v[20:23], v3, s[8:11], s5 offen offset:16')
    a('buffer_load_dwordx4 v[24:27], v3, s[8:11], s6 offen')
    a('buffer_load_dwordx4 v[28:31], v3, s[8:11], s6 offen offset:16')
    a('buffer_load_dwordx4 v[32:35], v4, s[12:15], 0 offen')
    a('buffer_load_ushort v36, v5, s[16:19], 0 offen')
    a('s_waitcnt vmcnt(0)')
    a('v_lshlrev_b32 v36, 16, v36')
    for e in range(4):
        a(f'v_lshlrev_b32 v{40+2*e}, 16, v{32+e}')
        a(f'v_and_b32 v{41+2*e}, 0xffff0000, v{32+e}')
    for e in range(8):
        a(f'v_add_f32 v{8+e}, v{8+e}, v{16+e}')
        a(f'v_add_f32 v{8+e}, v{8+e}, v{24+e}')
        a(f'v_add_f32 v{8+e}, v{8+e}, v36')
        a(f'v_add_f32 v{8+e}, v{8+e}, v{40+e}')
    for e in range(4):
        a(f'v_cvt_pk_bf16_f32 v{48+e}, v{8+2*e}, v{9+2*e}')
    a('buffer_store_dwordx4 v[48:51], v4, s[20:23], 0 offen')
    a.label(done)
    a('s_endpgm')
gen_comb.launch = ('comb_kernel', 640, 256, 0, 56, gen_comb)


from k_ln2 import layernorm1
GU2 = G(4, 2, 1, 2, 4)

def decode128(a, base):
    a(f's_sub_u32 s20, s2, {base}')
    a('s_and_b32 s21, s20, 7')
    a('s_lshr_b32 s20, s20, 3')
    a('s_and_b32 s22, s21, 3')
    a('s_lshl_b32 s22, s22, 1')
    a('s_and_b32 s25, s20, 1')
    a('s_add_u32 s22, s22, s25')
    a('s_lshl_b32 s22, s22, 8')
    a('s_lshr_b32 s23, s21, 2')
    a('s_lshl_b32 s23, s23, 3')
    a('s_lshr_b32 s25, s20, 1')
    a('s_add_u32 s23, s23, s25')
    a('s_lshl_b32 s23, s23, 8')

def gen_gemmkv(a, name):
    g = GA
    a.raw('.p2align 8')
    a.label(name)
    done = a.newlabel('KV_done'); LV = a.newlabel('KV_V')
    a('s_load_dwordx4 s[40:43], s[0:1], 0')
    a('s_load_dwordx4 s[44:47], s[0:1], 24')
    a('s_load_dwordx2 s[52:53], s[0:1], 104')
    a('s_cmp_ge_u32 s2, 256')
    a(f's_cbranch_scc1 {done}')
    a('s_waitcnt lgkmcnt(0)')
    LB = 131072
    D = 10; X = 16; S = 26; M = 27; T = 28
    def ln_loads():
        a('v_and_b32 v1, 63, v0')
        a('v_lshrrev_b32 v2, 6, v0')
        a('s_lshl_b32 s3, s2, 3')
        a('v_add_u32 v3, s3, v2')
        a('v_mul_u32_u24 v4, 1280, v3')
        a('v_lshl_add_u32 v4, v1, 2, v4')
        a('v_lshrrev_b32 v5, 3, v1')
        a('v_lshlrev_b32 v5, 16, v5')
        a('v_lshl_add_u32 v5, v3, 5, v5')
        a('v_bfe_u32 v6, v1, 2, 1')
        a('v_bfe_u32 v7, v3, 3, 1')
        a('v_xor_b32 v6, v6, v7')
        a('v_lshl_add_u32 v5, v6, 4, v5')
        a('v_and_b32 v6, 3, v1')
        a('v_lshl_add_u32 v5, v6, 2, v5')
        srd(a, 56, 40, XN_SZ)
        srd(a, 60, 52, XN_SZ, XN_OFF)
        srd(a, 64, 52, HT_SZ, HT_OFF)
        for j in range(5):
            a(f'buffer_load_dword v{D+j}, v4, s[56:59], 0 offen offset:{j*256}')
    def ln_mid():
        nd = (g.nR + g.nT)*g.NS
        a(f's_waitcnt vmcnt({nd})')
        for j in range(5):
            a(f'v_lshlrev_b32 v{X+2*j}, 16, v{D+j}')
            a(f'v_and_b32 v{X+2*j+1}, 0xffff0000, v{D+j}')
        layernorm1(a, X, S, M, T)
        for j in range(5):
            a(f'v_cvt_pk_bf16_f32 v{D+j}, v{X+2*j}, v{X+2*j+1}')
        for j in range(5):
            a(f's_mov_b32 s68, {j*8*65536}')
            a(f'buffer_store_dword v{D+j}, v5, s[60:63], s68 offen')
        layernorm1(a, X, S, M, T)
        a('v_lshlrev_b32 v6, 5, v1')
        a('v_lshl_add_u32 v6, v2, 1, v6')
        a(f'v_add_u32 v6, {LB}, v6')
        for j in range(5):
            a(f'ds_write_b16_d16_hi v6, v{X+2*j} offset:{j*2048}')
            a(f'ds_write_b16_d16_hi v6, v{X+2*j+1} offset:{j*2048+16}')
        a('s_waitcnt lgkmcnt(0)')
        a('s_barrier')
        a(f'v_lshlrev_b32 v6, 4, v{g.TID}')
        a(f'v_add_u32 v6, {LB}, v6')
        a('ds_read_b128 v[8:11], v6')
        a('ds_read_b128 v[12:15], v6 offset:8192')
        a('s_lshr_b32 s68, s3, 4')
        a('s_mul_i32 s68, s68, 20480')
        a('s_bfe_u32 s69, s3, 0x10003')
        a(f'v_bfe_u32 v6, v{g.TID}, 3, 1')
        a('v_xor_b32 v6, s69, v6')
        a(f'v_lshlrev_b32 v7, 5, v{g.TID}')
        a('v_lshl_add_u32 v7, v6, 4, v7')
        a('v_add_u32 v7, s68, v7')
        a('v_add_u32 v6, 16384, v7')
        a('s_waitcnt lgkmcnt(0)')
        a('buffer_store_dwordx4 v[8:11], v7, s[64:67], 0 offen')
        a(f'v_cmp_gt_u32 vcc, 128, v{g.TID}')
        a('s_and_saveexec_b64 s[70:71], vcc')
        a('buffer_store_dwordx4 v[12:15], v6, s[64:67], 0 offen')
        a('s_mov_b64 exec, s[70:71]')
        a('s_nop 1')
        zero_acc(a, g)
    def body(mode):
        setup_lds_addrs(a, g, False)
        ln_loads()
        setup_dma(a, g, 2048, 8192, 's22', 's23', rawR=1024)
        main_loop(a, g, 16, 8192, mode, False, 2048, mid=ln_mid, rawR=1024)
        a('s_nop 15')
    a('s_cmp_ge_u32 s2, 128')
    a(f's_cbranch_scc1 {LV}')
    decode128(a, 0)
    srd(a, 4, 42, CKV_SZ)
    srd(a, 8, 44, 512*8192)
    srd(a, 12, 52, BIG_SZ, K_OFF)
    body('RT')
    epilogue(a, g, 'RT', 2048)
    a('s_endpgm')
    a.label(LV)
    decode128(a, 128)
    srd(a, 4, 42, CKV_SZ)
    srd(a, 8, 46, 512*8192)
    srd(a, 12, 52, BIG_SZ, VT_OFF)
    body('TR')
    epilogue(a, g, 'TR', 4096)
    a.label(done)
    a('s_endpgm')
gen_gemmkv.launch = ('gemmkv_kernel', 256, 512, 131072+16384, GA.NV, gen_gemmkv)

def gen_gemmqu(a, name):
    a.raw('.p2align 8')
    a.label(name)
    done = a.newlabel('QU_done'); LQ = a.newlabel('QU_Q')
    a('s_load_dwordx2 s[42:43], s[0:1], 16')
    a('s_load_dwordx4 s[48:51], s[0:1], 56')
    a('s_load_dwordx2 s[52:53], s[0:1], 104')
    a('s_cmp_ge_u32 s2, 200')
    a(f's_cbranch_scc1 {done}')
    a('s_waitcnt lgkmcnt(0)')
    a('s_cmp_ge_u32 s2, 72')
    a(f's_cbranch_scc1 {LQ}')
    a('s_cmp_ge_u32 s2, 70')
    a(f's_cbranch_scc1 {done}')
    a('s_mul_hi_u32 s20, s2, 0x33333334')
    a('s_mul_i32 s21, s20, 5')
    a('s_sub_u32 s21, s2, s21')
    a('s_lshl_b32 s22, s21, 7')
    a('s_lshl_b32 s23, s20, 7')
    srd(a, 4, 52, HT_SZ, HT_OFF)
    srd(a, 8, 48, 2048*1728*2)
    srd(a, 12, 52, U_SZ, U_OFF)
    srd(a, 16, 50, 1728*2)
    g = GU2
    setup_lds_addrs(a, g, False)
    setup_dma(a, g, 640, 3456, 's22', 's23')
    zero_acc(a, g)
    main_loop(a, g, 64, 3456, 'RT', False, 640)
    a('s_nop 15')
    a('s_lshl_b32 s25, s28, 6')
    a('s_add_u32 s25, s25, s23')
    a('s_cmp_ge_u32 s25, 1728')
    a(f's_cbranch_scc1 {done}')
    epilogue(a, g, 'RT', 640, gelu=True)
    a('s_endpgm')
    a.label(LQ)
    g = GA
    decode128(a, 72)
    srd(a, 4, 52, XN_SZ, XN_OFF)
    srd(a, 8, 42, 640*8192)
    srd(a, 12, 52, BIG_SZ, Q_OFF)
    setup_lds_addrs(a, g, False)
    setup_dma(a, g, 2048, 8192, 's22', 's23')
    zero_acc(a, g)
    main_loop(a, g, 20, 8192, 'RT', False, 2048)
    a('s_nop 15')
    epilogue(a, g, 'RT', 2048)
    a.label(done)
    a('s_endpgm')
gen_gemmqu.launch = ('gemmqu_kernel', 200, 512, 131072, GA.NV, gen_gemmqu)
```

```python
from asmlib import *
from layout import *
import struct

def f2u(x):
    return struct.unpack('<I', struct.pack('<f', x))[0]
def log2(x):
    return x.bit_length()-1

class G:
    def __init__(s, WR, WT, nti, ntj, NS):
        s.WR, s.WT, s.nti, s.ntj, s.NS = WR, WT, nti, ntj, NS
        s.nw = WR*WT
        s.TR = WR*nti*32; s.TC = WT*ntj*32
        s.RB = s.TR*64; s.TB = 32*s.TC*2
        s.STAGE = s.RB + s.TB
        s.nR = s.TR//16//s.nw
        s.nT = s.TC//16//s.nw
        s.rpi = 1024//(s.TC*2)
        s.lpr = 64//s.rpi
        s.ACC = 0
        s.FR = nti*ntj*16
        s.FSZ = (nti+ntj)*4
        s.VRA = s.FR + 2*s.FSZ
        s.VTA = s.VRA + NS
        s.VGR = s.VTA + NS*ntj
        s.VGT = s.VGR + s.nR
        s.L = s.VGT + s.nT
        s.PK = (s.L + 12 + 3)//4*4
        s.TID = s.PK + 16
        s.NV = s.PK + 17

def setup_lds_addrs(a, g, kperm, swap=False):
    RW, TW = ('s28', 's27') if swap else ('s27', 's28')
    L = g.L
    if not swap:
        a(f'v_mov_b32 v{g.TID}, v0')
    a(f'v_and_b32 v{L}, 63, v{g.TID}')
    a(f'v_lshrrev_b32 v{L+1}, 6, v{g.TID}')
    a('s_nop 0')
    a(f'v_readfirstlane_b32 s24, v{L+1}')
    a(f's_lshr_b32 s27, s24, {log2(g.WT)}')
    a(f's_and_b32 s28, s24, {g.WT-1}')
    a(f'v_and_b32 v{L+2}, 31, v{L}')
    a(f's_mul_i32 s25, {RW}, {g.nti*32}')
    a(f'v_add_u32 v{L+2}, s25, v{L+2}')
    a(f'v_lshlrev_b32 v{L+2}, 5, v{L+2}')
    a(f'v_lshrrev_b32 v{L+3}, 5, v{L}')
    a(f'v_bfe_u32 v{L+4}, v{L}, 3, 1')
    a(f'v_xor_b32 v{L+4}, v{L+3}, v{L+4}')
    a(f'v_lshl_add_u32 v{g.VRA}, v{L+4}, 4, v{L+2}')
    for st in range(1, g.NS):
        a(f'v_add_u32 v{g.VRA+st}, {st*g.STAGE}, v{g.VRA}')
    rowb = g.TC*2
    a(f'v_bfe_u32 v{L+5}, v{L}, 2, 2')
    a(f'v_lshl_add_u32 v{L+6}, v{L+3}, {2 if kperm else 3}, v{L+5}')
    a(f'v_mul_u32_u24 v{L+6}, {rowb}, v{L+6}')
    a(f'v_bfe_u32 v{L+7}, v{L}, 4, 1')
    a(f'v_lshlrev_b32 v{L+7}, 1, v{L+7}')
    a(f'v_bfe_u32 v{L+8}, v{L}, 1, 1')
    a(f'v_add_u32 v{L+7}, v{L+7}, v{L+8}')
    a(f's_mul_i32 s25, {TW}, {g.ntj*4}')
    a(f'v_add_u32 v{L+7}, s25, v{L+7}')
    if g.TC >= 128:
        a(f'v_lshlrev_b32 v{L+8}, 2, v{L+5}')
    else:
        a(f'v_bfe_u32 v{L+8}, v{L}, 3, 1')
        a(f'v_lshlrev_b32 v{L+8}, 2, v{L+8}')
    a(f'v_and_b32 v{L+9}, 1, v{L}')
    a(f'v_lshlrev_b32 v{L+9}, 3, v{L+9}')
    a(f'v_add_u32 v{L+6}, v{L+6}, v{L+9}')
    a(f'v_add_u32 v{L+6}, {g.RB}, v{L+6}')
    for tj in range(g.ntj):
        a(f'v_add_u32 v{L+9}, {4*tj}, v{L+7}')
        a(f'v_xor_b32 v{L+9}, v{L+9}, v{L+8}')
        a(f'v_lshl_add_u32 v{g.VTA+tj}, v{L+9}, 4, v{L+6}')
        for st in range(1, g.NS):
            a(f'v_add_u32 v{g.VTA+st*g.ntj+tj}, {st*g.STAGE}, v{g.VTA+tj}')
    a(f's_mul_i32 s30, s24, {g.nR*1024}')
    a(f's_mul_i32 s31, s24, {g.nT*1024}')
    a(f's_add_u32 s31, s31, {g.RB}')

def setup_dma(a, g, NR, sT, rbase, cbase, rawR=0):
    L = g.L
    nrb = g.TR//32
    if rawR:
        a(f'v_lshrrev_b32 v{L+4}, 1, v{L}')
        a(f'v_bfe_u32 v{L+5}, v{L}, 4, 1')
        a(f'v_and_b32 v{L+6}, 1, v{L}')
        a(f'v_xor_b32 v{L+5}, v{L+5}, v{L+6}')
        a(f'v_mul_u32_u24 v{L+4}, {rawR}, v{L+4}')
        a(f'v_lshl_add_u32 v{L+4}, v{L+5}, 4, v{L+4}')
        for j in range(g.nR):
            a(f's_mul_i32 s25, s24, {g.nR}')
            a(f's_add_u32 s25, s25, {j}')
            a(f's_lshr_b32 s26, s25, {log2(nrb)}')
            a(f's_and_b32 s25, s25, {nrb-1}')
            a(f's_lshl_b32 s25, s25, 5')
            a(f's_add_u32 s25, s25, {rbase}')
            a(f's_mul_i32 s25, s25, {rawR}')
            a(f's_lshl_b32 s26, s26, 5')
            a(f's_add_u32 s25, s25, s26')
            a(f'v_add_u32 v{g.VGR+j}, s25, v{L+4}')
    if not rawR: a(f'v_lshlrev_b32 v{L+4}, 4, v{L}')
    for j in range(0 if rawR else g.nR):
        a(f's_mul_i32 s25, s24, {g.nR}')
        a(f's_add_u32 s25, s25, {j}')
        a(f's_lshr_b32 s26, s25, {log2(nrb)}')
        a(f's_and_b32 s25, s25, {nrb-1}')
        a(f's_mul_i32 s26, s26, {NR}')
        a(f's_lshl_b32 s25, s25, 5')
        a(f's_add_u32 s25, s25, s26')
        a(f's_add_u32 s25, s25, {rbase}')
        a(f's_lshl_b32 s25, s25, 5')
        a(f'v_add_u32 v{g.VGR+j}, s25, v{L+4}')
    a(f's_mov_b32 s26, {sT}')
    a(f's_lshl_b32 s29, {cbase}, 1')
    for j in range(g.nT):
        a(f's_mul_i32 s25, s24, {g.nT*g.rpi}')
        a(f's_add_u32 s25, s25, {j*g.rpi}')
        a(f'v_lshrrev_b32 v{L+4}, {log2(g.lpr)}, v{L}')
        a(f'v_add_u32 v{L+4}, s25, v{L+4}')
        if g.TC >= 128:
            a(f'v_and_b32 v{L+5}, 3, v{L+4}')
        else:
            a(f'v_bfe_u32 v{L+5}, v{L+4}, 1, 1')
        a(f'v_lshlrev_b32 v{L+5}, 2, v{L+5}')
        a(f'v_and_b32 v{L+6}, {g.lpr-1}, v{L}')
        a(f'v_xor_b32 v{L+5}, v{L+5}, v{L+6}')
        a(f'v_mul_lo_u32 v{L+4}, v{L+4}, s26')
        a(f'v_lshl_add_u32 v{L+4}, v{L+5}, 4, v{L+4}')
        a(f'v_add_u32 v{g.VGT+j}, s29, v{L+4}')

def zero_acc(a, g):
    for r in range(g.nti*g.ntj*16):
        a(f'v_mov_b32 v{g.ACC+r}, 0')

def main_loop(a, g, ks, sT, mode, kperm, NR, k0R=0, k0T=0, stamp=False, mid=None, rawR=0):
    nd = g.nR + g.nT
    a(f's_mov_b32 s32, {k0R}')
    a(f's_mov_b32 s33, {k0T}')
    rowb = g.TC*2
    def dma_list(st):
        out = []
        for j in range(g.nR):
            out.append([f's_add_u32 m0, s30, {st*g.STAGE + j*1024}', 's_nop 0',
                        f'buffer_load_dwordx4 v{g.VGR+j}, s[4:7], s32 offen lds'])
        for j in range(g.nT):
            out.append([f's_add_u32 m0, s31, {st*g.STAGE + j*1024}', 's_nop 0',
                        f'buffer_load_dwordx4 v{g.VGT+j}, s[8:11], s33 offen lds'])
        out[-1] = out[-1] + [f's_add_u32 s32, s32, {64 if rawR else NR*64}', f's_add_u32 s33, s33, {32*sT}']
        return out
    def read_list(st, kk):
        out = []
        fb = g.FR + kk*g.FSZ
        for i in range(g.ntj):
            for h in range(2):
                off = kk*16*rowb + (h*8*rowb if kperm else h*4*rowb)
                r0 = fb + g.nti*4 + i*4 + h*2
                out.append([f'ds_read_b64_tr_b16 v[{r0}:{r0+1}], v{g.VTA+st*g.ntj+i} offset:{off}'])
        for i in range(g.nti):
            out.append([f'ds_read_b128 v[{fb+i*4}:{fb+i*4+3}], v{g.VRA+st} offset:{kk*g.TR*32+i*1024}'])
        return out
    def mfma_list(kk):
        out = []
        fb = g.FR + kk*g.FSZ
        for ti in range(g.nti):
            for tj in range(g.ntj):
                rf = f'v[{fb+ti*4}:{fb+ti*4+3}]'
                tf = f'v[{fb+g.nti*4+tj*4}:{fb+g.nti*4+tj*4+3}]'
                if mode == 'RT':
                    acc = g.ACC + (ti*g.ntj+tj)*16; A, B = tf, rf
                elif mode == 'TR':
                    acc = g.ACC + (ti*g.ntj+tj)*16; A, B = rf, tf
                elif mode == 'TRx':
                    acc = g.ACC + (tj*g.ntj+ti)*16; A, B = rf, tf
                out.append(f'v_mfma_f32_32x32x16_bf16 v[{acc}:{acc+15}], {A}, {B}, v[{acc}:{acc+15}]')
        return out
    def interleave(mf, fillers):
        n = len(mf); m = len(fillers); idx = 0
        for i, x in enumerate(mf):
            a(x)
            tgt = min(m, ((i+1)*m*2 + n - 1)//n)
            while idx < tgt:
                for y in fillers[idx]: a(y)
                idx += 1
        while idx < m:
            for y in fillers[idx]: a(y)
            idx += 1
    for st in range(g.NS):
        for grp in dma_list(st):
            for y in grp: a(y)
    if mid: mid()
    a(f's_waitcnt vmcnt({nd*(g.NS-1)})')
    a('s_barrier')
    if stamp: a('s_memtime s[62:63]')
    for grp in read_list(0, 0):
        for y in grp: a(y)
    a('s_mov_b32 s34, 0')
    loop = a.newlabel('G_loop'); end = a.newlabel('G_end')
    a.label(loop)
    for st in range(g.NS):
        tail = a.newlabel('G_tail'); cont = a.newlabel('G_cont')
        a('s_waitcnt lgkmcnt(0)')
        interleave(mfma_list(0), read_list(st, 1))
        a(f's_add_u32 s35, s34, {g.NS}')
        a(f's_cmp_ge_u32 s35, {ks}')
        a(f's_cbranch_scc1 {tail}')
        a(f's_waitcnt vmcnt({nd*(g.NS-2)}) lgkmcnt(0)')
        a('s_barrier')
        rl = read_list((st+1) % g.NS, 0); dl = dma_list(st)
        fl = []
        for i in range(max(len(rl), len(dl))):
            if i < len(rl): fl.append(rl[i])
            if i < len(dl): fl.append(dl[i])
        interleave(mfma_list(1), fl)
        a(f's_branch {cont}')
        a.label(tail)
        a('s_waitcnt vmcnt(0) lgkmcnt(0)')
        a('s_barrier')
        interleave(mfma_list(1), read_list((st+1) % g.NS, 0))
        a.label(cont)
        a('s_add_u32 s34, s34, 1')
        a(f's_cmp_ge_u32 s34, {ks}')
        a(f's_cbranch_scc1 {end}')
    a(f's_branch {loop}')
    a.label(end)
    a('s_waitcnt lgkmcnt(0)')

def pack8(a, dst, src):
    for p in range(4):
        a(f'v_cvt_pk_bf16_f32 v{dst+p}, v{src+2*p}, v{src+2*p+1}')

def gelu_regs(a, g, acc, tj):
    L = g.L; BF = g.FR
    for r in range(16):
        x = f'v{acc+r}'; t = f'v{L+4+(r&3)}'
        a(f'v_cvt_pk_bf16_f32 {x}, {x}, {x}')
        a(f'v_lshlrev_b32 {x}, 16, {x}')
        a(f'v_add_f32 {x}, {x}, v{BF+tj*16+r}')
        a(f'v_cvt_pk_bf16_f32 {x}, {x}, {x}')
        a(f'v_lshlrev_b32 {x}, 16, {x}')
        a(f'v_mul_f32 {t}, {x}, {x}')
        a(f'v_mul_f32 {t}, s36, {t}')
        a(f'v_add_f32 {t}, s37, {t}')
        a(f'v_mul_f32 {t}, {t}, {x}')
        a(f'v_mul_f32 {t}, s38, {t}')
        a(f'v_exp_f32 {t}, {t}')
        a('s_nop 0')
        a(f'v_add_f32 {t}, 1.0, {t}')
        a(f'v_rcp_f32 {t}, {t}')
        a('s_nop 0')
        a(f'v_mul_f32 {x}, {x}, {t}')

def epilogue(a, g, mode, NR, gelu=False):
    L = g.L
    if mode == 'RT':
        rw, rn, rb = 's27', g.nti, 's22'; cw, cn, cb = 's28', g.ntj, 's23'
    else:
        rw, rn, rb = 's28', g.ntj, 's23'; cw, cn, cb = 's27', g.nti, 's22'
    a(f'v_and_b32 v{L+2}, 31, v{L}')
    a(f's_mul_i32 s25, {rw}, {rn*32}')
    a(f's_add_u32 s25, s25, {rb}')
    a(f'v_add_u32 v{L+2}, s25, v{L+2}')
    a(f'v_lshlrev_b32 v{L+2}, 5, v{L+2}')
    a(f'v_lshrrev_b32 v{L+3}, 5, v{L}')
    a(f'v_bfe_u32 v{L+8}, v{L}, 3, 1')
    a(f'v_xor_b32 v{L+8}, v{L+3}, v{L+8}')
    a(f'v_lshl_add_u32 v{L+2}, v{L+8}, 4, v{L+2}')
    a(f's_mul_i32 s25, {cw}, {cn*32}')
    a(f's_add_u32 s25, s25, {cb}')
    a(f's_lshr_b32 s26, s25, 4')
    a(f's_mul_i32 s26, s26, {NR*32}')
    a(f'v_add_u32 v{L+2}, s26, v{L+2}')
    if gelu:
        a(f's_lshl_b32 s25, s25, 1')
        a(f'v_lshlrev_b32 v{L+8}, 3, v{L+3}')
        a(f'v_add_u32 v{L+8}, s25, v{L+8}')
        B = g.PK
        for tj in range(g.ntj):
            for q in range(4):
                a(f'buffer_load_dwordx2 v[{B+(tj*4+q)*2}:{B+(tj*4+q)*2+1}], v{L+8}, s[16:19], 0 offen offset:{tj*64+q*16}')
        a('s_waitcnt vmcnt(0)')
        BF = g.FR
        for gi in range(4*g.ntj):
            a(f'v_lshlrev_b32 v{BF+4*gi}, 16, v{B+2*gi}')
            a(f'v_and_b32 v{BF+4*gi+1}, 0xffff0000, v{B+2*gi}')
            a(f'v_lshlrev_b32 v{BF+4*gi+2}, 16, v{B+2*gi+1}')
            a(f'v_and_b32 v{BF+4*gi+3}, 0xffff0000, v{B+2*gi+1}')
        a(f's_mov_b32 s36, 0x{f2u(0.7978845608028654*0.044715):x}')
        a(f's_mov_b32 s37, 0x{f2u(0.7978845608028654):x}')
        a(f's_mov_b32 s38, 0x{f2u(-2.0*1.4426950408889634):x}')
    cnt = 0
    for ti in range(g.nti):
        for tj in range(g.ntj):
            acc = g.ACC + (ti*g.ntj+tj)*16
            if gelu:
                gelu_regs(a, g, acc, tj)
            rt, ct = (ti, tj) if mode == 'RT' else (tj, ti)
            for grp in range(2):
                dreg = g.PK + (cnt % 4)*4; cnt += 1
                pack8(a, dreg, acc + grp*8)
                a(f's_mov_b32 s39, {(ct*2+grp)*NR*32}')
                a(f'buffer_store_dwordx4 v[{dreg}:{dreg+3}], v{L+2}, s[12:15], s39 offen offset:{rt*1024}')

GA = G(2, 4, 4, 2, 4)
GU = G(2, 4, 2, 2, 4)
NU = 40

def gen_gemm1(a, name):
    a.raw('.p2align 8')
    a.label(name)
    done = a.newlabel('G1_done')
    LQ = a.newlabel('G1_Q'); LK = a.newlabel('G1_K'); LV = a.newlabel('G1_V')
    a('s_load_dwordx4 s[40:43], s[0:1], 8')
    a('s_load_dwordx4 s[44:47], s[0:1], 24')
    a('s_load_dwordx4 s[48:51], s[0:1], 56')
    a('s_load_dwordx2 s[52:53], s[0:1], 104')
    a(f's_cmp_ge_u32 s2, {NU+384}')
    a(f's_cbranch_scc1 {done}')
    a('s_waitcnt lgkmcnt(0)')
    a(f's_cmp_ge_u32 s2, {NU}')
    a(f's_cbranch_scc1 {LQ}')
    a('s_cmp_ge_u32 s2, 35')
    a(f's_cbranch_scc1 {done}')
    a('s_mul_hi_u32 s20, s2, 0x33333334')
    a('s_mul_i32 s21, s20, 5')
    a('s_sub_u32 s21, s2, s21')
    a('s_lshl_b32 s22, s21, 7')
    a('s_lshl_b32 s23, s20, 8')
    srd(a, 4, 52, HT_SZ, HT_OFF)
    srd(a, 8, 48, 2048*1728*2)
    srd(a, 12, 52, U_SZ, U_OFF)
    srd(a, 16, 50, 1728*2)
    g = GU
    setup_lds_addrs(a, g, False)
    setup_dma(a, g, 640, 3456, 's22', 's23')
    zero_acc(a, g)
    main_loop(a, g, 64, 3456, 'RT', False, 640)
    a('s_nop 15')
    a('s_lshl_b32 s25, s28, 6')
    a('s_add_u32 s25, s25, s23')
    a('s_cmp_ge_u32 s25, 1728')
    a(f's_cbranch_scc1 {done}')
    epilogue(a, g, 'RT', 640, gelu=True)
    a('s_endpgm')
    g = GA
    def decode(base):
        a(f's_sub_u32 s20, s2, {base}')
        a('s_and_b32 s21, s20, 7')
        a('s_lshr_b32 s20, s20, 3')
        a('s_and_b32 s22, s21, 3')
        a('s_lshl_b32 s22, s22, 1')
        a('s_and_b32 s25, s20, 1')
        a('s_add_u32 s22, s22, s25')
        a('s_lshl_b32 s22, s22, 8')
        a('s_lshr_b32 s23, s21, 2')
        a('s_lshl_b32 s23, s23, 3')
        a('s_lshr_b32 s25, s20, 1')
        a('s_add_u32 s23, s23, s25')
        a('s_lshl_b32 s23, s23, 8')
    import os
    ST = os.environ.get('STAMP')
    def body(ks, mode):
        if ST: a('s_memtime s[60:61]')
        setup_lds_addrs(a, g, False)
        setup_dma(a, g, 2048, 8192, 's22', 's23')
        zero_acc(a, g)
        main_loop(a, g, ks, 8192, mode, False, 2048, stamp=bool(ST))
        if ST: a('s_memtime s[64:65]')
        a('s_nop 15')
    def stamp_out():
        if not ST: return
        a('s_waitcnt vmcnt(0)')
        a('s_memtime s[66:67]')
        a('s_load_dwordx2 s[70:71], s[0:1], 96')
        a('s_waitcnt lgkmcnt(0)')
        srd(a, 72, 70, 256)
        a('s_sub_u32 s62, s62, s60')
        a('s_sub_u32 s64, s64, s60')
        a('s_sub_u32 s66, s66, s60')
        a('v_mov_b32 v0, s62')
        a('v_mov_b32 v1, s64')
        a('v_mov_b32 v2, s66')
        a('v_mov_b32 v3, s60')
        a('s_and_b32 s76, s2, 15')
        a('s_lshl_b32 s76, s76, 4')
        a('v_mov_b32 v4, s76')
        a('s_cmp_lg_u32 s24, 0')
        sk = a.newlabel('stk')
        a(f's_cbranch_scc1 {sk}')
        a('v_cmp_eq_u32 vcc, 0, v%d' % g.L)
        a('s_and_saveexec_b64 s[78:79], vcc')
        a('buffer_store_dwordx4 v[0:3], v4, s[72:75], 0 offen')
        a.label(sk)
    a.label(LQ)
    a(f's_cmp_ge_u32 s2, {NU+128}')
    a(f's_cbranch_scc1 {LK}')
    decode(NU)
    srd(a, 4, 52, XN_SZ, XN_OFF)
    srd(a, 8, 42, 640*8192)
    srd(a, 12, 52, BIG_SZ, Q_OFF)
    body(20, 'RT')
    epilogue(a, g, 'RT', 2048)
    a('s_endpgm')
    a.label(LK)
    a(f's_cmp_ge_u32 s2, {NU+256}')
    a(f's_cbranch_scc1 {LV}')
    decode(NU+128)
    srd(a, 4, 52, CKV_SZ, CKV_OFF)
    srd(a, 8, 44, 512*8192)
    srd(a, 12, 52, BIG_SZ, K_OFF)
    body(16, 'RT')
    epilogue(a, g, 'RT', 2048)
    stamp_out()
    a('s_endpgm')
    a.label(LV)
    decode(NU+256)
    srd(a, 4, 52, CKV_SZ, CKV_OFF)
    srd(a, 8, 46, 512*8192)
    srd(a, 12, 52, BIG_SZ, VT_OFF)
    body(16, 'TR')
    epilogue(a, g, 'TR', 4096)
    a.label(done)
    a('s_endpgm')
gen_gemm1.launch = ('gemm1_kernel', NU+384, 512, GA.STAGE*GA.NS, max(GA.NV, GU.NV), gen_gemm1)

GF = G(2, 2, 2, 2, 4)
PART_OFF = 0x6000000
PART_SZ = 3*2048*640*4

def gen_final(a, name):
    g = GF
    a.raw('.p2align 8')
    a.label(name)
    done = a.newlabel('F_done'); EP = a.newlabel('F_ep')
    a('s_load_dwordx2 s[42:43], s[0:1], 40')
    a('s_load_dwordx2 s[44:45], s[0:1], 72')
    a('s_load_dwordx2 s[52:53], s[0:1], 104')
    a('s_cmp_ge_u32 s2, 240')
    a(f's_cbranch_scc1 {done}')
    a('s_and_b32 s20, s2, 7')
    a('s_lshr_b32 s21, s2, 3')
    a('s_mul_hi_u32 s36, s21, 0x55555556')
    a('s_mul_i32 s37, s36, 3')
    a('s_sub_u32 s37, s21, s37')
    a('s_and_b32 s22, s36, 1')
    a('s_lshl_b32 s20, s20, 1')
    a('s_add_u32 s22, s22, s20')
    a('s_lshl_b32 s22, s22, 7')
    a('s_lshr_b32 s23, s36, 1')
    a('s_lshl_b32 s23, s23, 7')
    a('s_waitcnt lgkmcnt(0)')
    setup_lds_addrs(a, g, True)
    zero_acc(a, g)
    srd(a, 4, 52, BIG_SZ, CTX_OFF)
    srd(a, 8, 42, 4096*1280)
    setup_dma(a, g, 2048, 1280, 's22', 's23')
    a('s_mul_i32 s38, s37, 60')
    a(f's_mul_i32 s39, s38, {2048*64}')
    a(f's_mul_i32 s38, s38, {32*1280}')
    a('s_cmp_eq_u32 s37, 2')
    a('s_cselect_b32 s54, 8, 60')
    main_loop(a, g, 's54', 1280, 'RT', True, 2048, k0R='s39', k0T='s38')
    a('s_cmp_lg_u32 s37, 2')
    a(f's_cbranch_scc1 {EP}')
    a('s_barrier')
    srd(a, 4, 52, U_SZ, U_OFF)
    srd(a, 8, 44, 1728*4096)
    setup_lds_addrs(a, g, True, swap=True)
    setup_dma(a, g, 640, 4096, 's23', 's22')
    main_loop(a, g, 54, 4096, 'TRx', True, 640)
    a.label(EP)
    a('s_nop 15')
    L = g.L
    srd(a, 12, 52, PART_SZ, PART_OFF)
    a(f'v_and_b32 v{L+2}, 31, v{L}')
    a('s_lshl_b32 s25, s27, 6')
    a('s_add_u32 s25, s25, s22')
    a(f'v_add_u32 v{L+2}, s25, v{L+2}')
    a(f'v_lshlrev_b32 v{L+2}, 5, v{L+2}')
    a(f'v_lshrrev_b32 v{L+3}, 5, v{L}')
    a(f'v_lshl_add_u32 v{L+2}, v{L+3}, 4, v{L+2}')
    a('s_lshl_b32 s25, s28, 6')
    a('s_add_u32 s25, s25, s23')
    a('s_lshr_b32 s25, s25, 3')
    a('s_lshl_b32 s25, s25, 16')
    a(f's_mul_i32 s26, s37, {2048*640*4}')
    a('s_add_u32 s25, s25, s26')
    a(f'v_add_u32 v{L+2}, s25, v{L+2}')
    for ti in range(2):
        for tj in range(2):
            acc = g.ACC + (ti*2+tj)*16
            for q in range(4):
                a(f's_mov_b32 s39, {(tj*4+q)*65536}')
                a(f'buffer_store_dwordx4 v[{acc+4*q}:{acc+4*q+3}], v{L+2}, s[12:15], s39 offen offset:{ti*1024}')
    a.label(done)
    a('s_endpgm')
gen_final.launch = ('final_kernel', 240, 256, GF.STAGE*GF.NS, GF.NV, gen_final)

def gen_comb(a, name):
    a.raw('.p2align 8')
    a.label(name)
    done = a.newlabel('C_done')
    a('s_load_dwordx2 s[40:41], s[0:1], 0')
    a('s_load_dwordx4 s[44:47], s[0:1], 80')
    a('s_load_dwordx2 s[52:53], s[0:1], 104')
    a('s_cmp_ge_u32 s2, 640')
    a(f's_cbranch_scc1 {done}')
    a('s_mul_hi_u32 s3, s2, 0x1999999a')
    a('s_mul_i32 s4, s3, 10')
    a('s_sub_u32 s4, s2, s4')
    a('v_lshrrev_b32 v1, 3, v0')
    a('s_lshl_b32 s3, s3, 5')
    a('v_add_u32 v1, s3, v1')
    a('v_and_b32 v2, 7, v0')
    a('s_lshl_b32 s4, s4, 3')
    a('v_add_u32 v2, s4, v2')
    a('v_lshlrev_b32 v3, 16, v2')
    a('v_lshl_add_u32 v3, v1, 5, v3')
    a('v_mul_u32_u24 v4, 1280, v1')
    a('v_lshl_add_u32 v4, v2, 4, v4')
    a('v_lshlrev_b32 v5, 1, v1')
    a('s_waitcnt lgkmcnt(0)')
    srd(a, 8, 52, PART_SZ, PART_OFF)
    srd(a, 12, 40, 2048*1280)
    srd(a, 16, 44, 4096)
    srd(a, 20, 46, 2048*1280)
    a('s_mov_b32 s5, %d' % (2048*640*4))
    a('s_mov_b32 s6, %d' % (2*2048*640*4))
    a('buffer_load_dwordx4 v[8:11], v3, s[8:11], 0 offen')
    a('buffer_load_dwordx4 v[12:15], v3, s[8:11], 0 offen offset:16')
    a('buffer_load_dwordx4 v[16:19], v3, s[8:11], s5 offen')
    a('buffer_load_dwordx4 v[20:23], v3, s[8:11], s5 offen offset:16')
    a('buffer_load_dwordx4 v[24:27], v3, s[8:11], s6 offen')
    a('buffer_load_dwordx4 v[28:31], v3, s[8:11], s6 offen offset:16')
    a('buffer_load_dwordx4 v[32:35], v4, s[12:15], 0 offen')
    a('buffer_load_ushort v36, v5, s[16:19], 0 offen')
    a('s_waitcnt vmcnt(0)')
    a('v_lshlrev_b32 v36, 16, v36')
    for e in range(4):
        a(f'v_lshlrev_b32 v{40+2*e}, 16, v{32+e}')
        a(f'v_and_b32 v{41+2*e}, 0xffff0000, v{32+e}')
    for e in range(8):
        a(f'v_add_f32 v{8+e}, v{8+e}, v{16+e}')
        a(f'v_add_f32 v{8+e}, v{8+e}, v{24+e}')
        a(f'v_add_f32 v{8+e}, v{8+e}, v36')
        a(f'v_add_f32 v{8+e}, v{8+e}, v{40+e}')
    for e in range(4):
        a(f'v_cvt_pk_bf16_f32 v{48+e}, v{8+2*e}, v{9+2*e}')
    a('buffer_store_dwordx4 v[48:51], v4, s[20:23], 0 offen')
    a.label(done)
    a('s_endpgm')
gen_comb.launch = ('comb_kernel', 640, 256, 0, 56, gen_comb)


from k_ln2 import layernorm1
GU2 = G(4, 2, 1, 2, 4)

def decode128(a, base):
    a(f's_sub_u32 s20, s2, {base}')
    a('s_and_b32 s21, s20, 7')
    a('s_lshr_b32 s20, s20, 3')
    a('s_and_b32 s22, s21, 3')
    a('s_lshl_b32 s22, s22, 1')
    a('s_and_b32 s25, s20, 1')
    a('s_add_u32 s22, s22, s25')
    a('s_lshl_b32 s22, s22, 8')
    a('s_lshr_b32 s23, s21, 2')
    a('s_lshl_b32 s23, s23, 3')
    a('s_lshr_b32 s25, s20, 1')
    a('s_add_u32 s23, s23, s25')
    a('s_lshl_b32 s23, s23, 8')

def gen_gemmkv(a, name):
    g = GA
    a.raw('.p2align 8')
    a.label(name)
    done = a.newlabel('KV_done'); LV = a.newlabel('KV_V')
    a('s_load_dwordx4 s[40:43], s[0:1], 0')
    a('s_load_dwordx4 s[44:47], s[0:1], 24')
    a('s_load_dwordx2 s[52:53], s[0:1], 104')
    a('s_cmp_ge_u32 s2, 256')
    a(f's_cbranch_scc1 {done}')
    a('s_waitcnt lgkmcnt(0)')
    LB = 131072
    D = 10; X = 16; S = 26; M = 27; T = 28
    def ln_loads():
        a('v_and_b32 v1, 63, v0')
        a('v_lshrrev_b32 v2, 6, v0')
        a('s_lshl_b32 s3, s2, 3')
        a('v_add_u32 v3, s3, v2')
        a('v_mul_u32_u24 v4, 1280, v3')
        a('v_lshl_add_u32 v4, v1, 2, v4')
        a('v_lshrrev_b32 v5, 3, v1')
        a('v_lshlrev_b32 v5, 16, v5')
        a('v_lshl_add_u32 v5, v3, 5, v5')
        a('v_bfe_u32 v6, v1, 2, 1')
        a('v_bfe_u32 v7, v3, 3, 1')
        a('v_xor_b32 v6, v6, v7')
        a('v_lshl_add_u32 v5, v6, 4, v5')
        a('v_and_b32 v6, 3, v1')
        a('v_lshl_add_u32 v5, v6, 2, v5')
        srd(a, 56, 40, XN_SZ)
        srd(a, 60, 52, XN_SZ, XN_OFF)
        srd(a, 64, 52, HT_SZ, HT_OFF)
        for j in range(5):
            a(f'buffer_load_dword v{D+j}, v4, s[56:59], 0 offen offset:{j*256}')
    def ln_mid():
        nd = (g.nR + g.nT)*g.NS
        a(f's_waitcnt vmcnt({nd})')
        for j in range(5):
            a(f'v_lshlrev_b32 v{X+2*j}, 16, v{D+j}')
            a(f'v_and_b32 v{X+2*j+1}, 0xffff0000, v{D+j}')
        layernorm1(a, X, S, M, T)
        for j in range(5):
            a(f'v_cvt_pk_bf16_f32 v{D+j}, v{X+2*j}, v{X+2*j+1}')
        for j in range(5):
            a(f's_mov_b32 s68, {j*8*65536}')
            a(f'buffer_store_dword v{D+j}, v5, s[60:63], s68 offen')
        layernorm1(a, X, S, M, T)
        a('v_lshlrev_b32 v6, 5, v1')
        a('v_lshl_add_u32 v6, v2, 1, v6')
        a(f'v_add_u32 v6, {LB}, v6')
        for j in range(5):
            a(f'ds_write_b16_d16_hi v6, v{X+2*j} offset:{j*2048}')
            a(f'ds_write_b16_d16_hi v6, v{X+2*j+1} offset:{j*2048+16}')
        a('s_waitcnt lgkmcnt(0)')
        a('s_barrier')
        a(f'v_lshlrev_b32 v6, 4, v{g.TID}')
        a(f'v_add_u32 v6, {LB}, v6')
        a('ds_read_b128 v[8:11], v6')
        a('ds_read_b128 v[12:15], v6 offset:8192')
        a('s_lshr_b32 s68, s3, 4')
        a('s_mul_i32 s68, s68, 20480')
        a('s_bfe_u32 s69, s3, 0x10003')
        a(f'v_bfe_u32 v6, v{g.TID}, 3, 1')
        a('v_xor_b32 v6, s69, v6')
        a(f'v_lshlrev_b32 v7, 5, v{g.TID}')
        a('v_lshl_add_u32 v7, v6, 4, v7')
        a('v_add_u32 v7, s68, v7')
        a('v_add_u32 v6, 16384, v7')
        a('s_waitcnt lgkmcnt(0)')
        a('buffer_store_dwordx4 v[8:11], v7, s[64:67], 0 offen')
        a(f'v_cmp_gt_u32 vcc, 128, v{g.TID}')
        a('s_and_saveexec_b64 s[70:71], vcc')
        a('buffer_store_dwordx4 v[12:15], v6, s[64:67], 0 offen')
        a('s_mov_b64 exec, s[70:71]')
        a('s_nop 1')
        zero_acc(a, g)
    def body(mode):
        setup_lds_addrs(a, g, False)
        ln_loads()
        setup_dma(a, g, 2048, 8192, 's22', 's23', rawR=1024)
        main_loop(a, g, 16, 8192, mode, False, 2048, mid=ln_mid, rawR=1024)
        a('s_nop 15')
    a('s_cmp_ge_u32 s2, 128')
    a(f's_cbranch_scc1 {LV}')
    decode128(a, 0)
    srd(a, 4, 42, CKV_SZ)
    srd(a, 8, 44, 512*8192)
    srd(a, 12, 52, BIG_SZ, K_OFF)
    body('RT')
    epilogue(a, g, 'RT', 2048)
    a('s_endpgm')
    a.label(LV)
    decode128(a, 128)
    srd(a, 4, 42, CKV_SZ)
    srd(a, 8, 46, 512*8192)
    srd(a, 12, 52, BIG_SZ, VT_OFF)
    body('TR')
    epilogue(a, g, 'TR', 4096)
    a.label(done)
    a('s_endpgm')
gen_gemmkv.launch = ('gemmkv_kernel', 256, 512, 131072+16384, GA.NV, gen_gemmkv)

def gen_gemmqu(a, name):
    a.raw('.p2align 8')
    a.label(name)
    done = a.newlabel('QU_done'); LQ = a.newlabel('QU_Q')
    a('s_load_dwordx2 s[42:43], s[0:1], 16')
    a('s_load_dwordx4 s[48:51], s[0:1], 56')
    a('s_load_dwordx2 s[52:53], s[0:1], 104')
    a('s_cmp_ge_u32 s2, 200')
    a(f's_cbranch_scc1 {done}')
    a('s_waitcnt lgkmcnt(0)')
    a('s_cmp_ge_u32 s2, 72')
    a(f's_cbranch_scc1 {LQ}')
    a('s_cmp_ge_u32 s2, 70')
    a(f's_cbranch_scc1 {done}')
    a('s_mul_hi_u32 s20, s2, 0x33333334')
    a('s_mul_i32 s21, s20, 5')
    a('s_sub_u32 s21, s2, s21')
    a('s_lshl_b32 s22, s21, 7')
    a('s_lshl_b32 s23, s20, 7')
    srd(a, 4, 52, HT_SZ, HT_OFF)
    srd(a, 8, 48, 2048*1728*2)
    srd(a, 12, 52, U_SZ, U_OFF)
    srd(a, 16, 50, 1728*2)
    g = GU2
    setup_lds_addrs(a, g, False)
    setup_dma(a, g, 640, 3456, 's22', 's23')
    zero_acc(a, g)
    main_loop(a, g, 64, 3456, 'RT', False, 640)
    a('s_nop 15')
    a('s_lshl_b32 s25, s28, 6')
    a('s_add_u32 s25, s25, s23')
    a('s_cmp_ge_u32 s25, 1728')
    a(f's_cbranch_scc1 {done}')
    epilogue(a, g, 'RT', 640, gelu=True)
    a('s_endpgm')
    a.label(LQ)
    g = GA
    decode128(a, 72)
    srd(a, 4, 52, XN_SZ, XN_OFF)
    srd(a, 8, 42, 640*8192)
    srd(a, 12, 52, BIG_SZ, Q_OFF)
    setup_lds_addrs(a, g, False)
    setup_dma(a, g, 2048, 8192, 's22', 's23')
    zero_acc(a, g)
    main_loop(a, g, 20, 8192, 'RT', False, 2048)
    a('s_nop 15')
    epilogue(a, g, 'RT', 2048)
    a.label(done)
    a('s_endpgm')
gen_gemmqu.launch = ('gemmqu_kernel', 200, 512, 131072, GA.NV, gen_gemmqu)
```
